```python
import torch

def _softmax(x, axis=-1):
    return torch.softmax(x, dim=axis)

def _gelu(x):
    return torch.nn.functional.gelu(x, approximate='tanh')

def _silu(x):
    return torch.nn.functional.silu(x)

def _sigmoid(x):
    return torch.sigmoid(x)

def _layernorm(x, axis=-1, eps=1e-05):
    m = x.mean(dim=axis, keepdim=True)
    v = x.var(dim=axis, keepdim=True, unbiased=False)
    return (x - m) / torch.sqrt(v + eps)

def _scatter_add(tgt, idx, src, axis=0):
    return tgt.clone().index_add_(axis, idx, src)

def _segment_sum(src, seg, n):
    out = torch.zeros((n,) + src.shape[1:], dtype=src.dtype)
    return out.index_add_(0, seg, src)

def _pad(x, pw):
    flat = tuple((v for pair in reversed(pw) for v in pair))
    return torch.nn.functional.pad(x, flat)
kernel_name = 'adaLN_cond__sliding_block_cached__mixer_channel_mlp__decode'

def setup_inputs():

    _w = lambda a: (lambda t: t.to(torch.bfloat16) if t.is_floating_point() else t)(torch.as_tensor(a))

    def _A_setup():
        B, Sq, D = (2, 1, 576)
        Hq, Hkv, Sk, Dh = (32, 16, 8192, 128)
        assert Hq % Hkv == 0, (Hq, Hkv)
        return {'x': _w((lambda *s: torch.randn(*s, dtype=torch.bfloat16) * 0.1)(B, Sq, D)), 'k_cache': _w((lambda *s: torch.randn(*s, dtype=torch.bfloat16) * 0.8)(B, Hkv, Sk, Dh)), 'v_cache': _w((lambda *s: torch.randn(*s, dtype=torch.bfloat16) * 0.8)(B, Hkv, Sk, Dh)), 'wq': _w((lambda *s: torch.randn(*s, dtype=torch.bfloat16) * 0.8)(D, Hq * Dh) * D ** (-0.5)), 'wo': _w((lambda *s: torch.randn(*s, dtype=torch.bfloat16) * 0.8)(Hq * Dh, D) * (Hq * Dh) ** (-0.5))}
    _A_in = _A_setup()

    def _B_setup():
        B, S, D, F = (2, 1, 576, 4608)
        return {'x': _w((lambda *s: torch.randn(*s, dtype=torch.bfloat16) * 0.1)(B, S, D)), 'w1': _w((lambda *s: torch.randn(*s, dtype=torch.bfloat16) * 3.2)(D, F) * D ** (-0.5)), 'b1': _w((lambda *s: torch.randn(*s, dtype=torch.bfloat16) * 3.2)(F)), 'w2': _w((lambda *s: torch.randn(*s, dtype=torch.bfloat16) * 3.2)(F, D) * F ** (-0.5)), 'b2': _w((lambda *s: torch.randn(*s, dtype=torch.bfloat16) * 3.2)(D))}
    _B_in = _B_setup()
    return {'A_x': _A_in['x'], 'A_k_cache': _A_in['k_cache'], 'A_v_cache': _A_in['v_cache'], 'A_wq': _A_in['wq'], 'A_wo': _A_in['wo'], 'B_x': _B_in['x'], 'B_w1': _B_in['w1'], 'B_b1': _B_in['b1'], 'B_w2': _B_in['w2'], 'B_b2': _B_in['b2'], 'c': _w((lambda *s: torch.randn(*s, dtype=torch.bfloat16) * 0.4)(2, 576) * 8.0), 'w_mod': _w((lambda *s: torch.randn(*s, dtype=torch.bfloat16) * 0.4)(576, 6 * 576) * 576 ** (-0.5) * 8.0)}

def reference(A_x, A_k_cache, A_v_cache, A_wq, A_wo, B_x, B_w1, B_b1, B_w2, B_b2, c, w_mod):

    def _A_ref(x, k_cache, v_cache, wq, wo):
        B, Sq, D = x.shape
        Hq, Dh = (32, 128)
        Hkv, Sk = (k_cache.shape[1], k_cache.shape[2])
        W = min(4096, max(256, Sk // 4))
        rep = Hq // Hkv
        q = (lambda x, *d: x.permute(*d))((x @ wq).reshape(B, Sq, Hq, Dh), 0, 2, 1, 3)
        k = (lambda x, n, axis: torch.repeat_interleave(x, n, dim=axis))(k_cache[:, :, Sk - W:, :], rep, axis=1)
        v = (lambda x, n, axis: torch.repeat_interleave(x, n, dim=axis))(v_cache[:, :, Sk - W:, :], rep, axis=1)
        scores = torch.einsum('bhqd,bhkd->bhqk', q, k) * Dh ** (-0.5)
        p = _softmax(scores, axis=-1)
        o = torch.einsum('bhqk,bhkd->bhqd', p, v)
        return (lambda x, *d: x.permute(*d))(o, 0, 2, 1, 3).reshape(B, Sq, Hq * Dh) @ wo

    def _B_ref(x, w1, b1, w2, b2):
        y = _layernorm(x, axis=-1)
        h = _gelu(torch.einsum('bsd,df->bsf', y, w1) + b1)
        return torch.einsum('bsf,fd->bsd', h, w2) + b2
    x = A_x
    mod = (_silu(c) @ w_mod).reshape(c.shape[0], 6, 1, -1)
    sa, ca, ga, sb, cb, gb = (mod[:, 0].clone(), mod[:, 1].clone(), mod[:, 2].clone(), mod[:, 3].clone(), mod[:, 4].clone(), mod[:, 5].clone())
    h = _layernorm(x, axis=-1) * (1 + ca) + sa
    x = x + ga * _A_ref(h, A_k_cache, A_v_cache, A_wq, A_wo)
    h = _layernorm(x, axis=-1) * (1 + cb) + sb
    x = x + gb * _B_ref(h, B_w1, B_b1, B_w2, B_b2)
    return x
```

```python
import re

TRANS = ("v_exp_f32", "v_log_f32", "v_rcp_f32", "v_rsq_f32", "v_sqrt_f32", "v_sin_f32", "v_cos_f32")


def _regs(tok):
    tok = tok.strip()
    tok = tok.lstrip("-")
    m = re.match(r"^abs\((.*)\)$", tok)
    if m:
        tok = m.group(1)
    m = re.match(r"^\|(.*)\|$", tok)
    if m:
        tok = m.group(1)
    m = re.match(r"^([vsa])(\d+)$", tok)
    if m:
        return [(m.group(1), int(m.group(2)))]
    m = re.match(r"^([vsa])\[(\d+):(\d+)\]$", tok)
    if m:
        return [(m.group(1), i) for i in range(int(m.group(2)), int(m.group(3)) + 1)]
    if tok == "vcc":
        return [("s", "vcc")]
    if tok in ("vcc_lo", "vcc_hi"):
        return [("s", "vcc")]
    if tok == "exec":
        return [("s", "exec")]
    if tok == "m0":
        return [("s", "m0")]
    return []


class Asm:
    def __init__(self):
        self.out = []
        self.t = 0
        self.vw = {}
        self.sw = {}
        self.m0w = -100
        self.stdata = {}
        self.mfc = {}
        self.execw = -100
        self.nops = 0

    def raw(self, s):
        self.out.append(s)

    def label(self, name):
        self.out.append(name + ":")

    def c(self, s):
        self.out.append("    ; " + s)

    def __call__(self, s):
        for line in s.strip().split("\n"):
            line = line.split(";")[0].strip()
            if not line:
                continue
            if line.endswith(":"):
                self.label(line[:-1])
                continue
            self.ins(line)

    def ins(self, line):
        parts = line.split(None, 1)
        op = parts[0]
        rest = parts[1] if len(parts) > 1 else ""
        toks = [x.strip() for x in re.split(r",(?![^\[]*\])", rest)]
        ops = []
        mods = ""
        for i, tk in enumerate(toks):
            if not tk:
                continue
            sp = tk.split(None, 1)
            ops.append(sp[0])
            if len(sp) > 1:
                mods += " " + sp[1]
        need = 0

        def req(t0, ws):
            nonlocal need
            need = max(need, t0 + ws + 1)

        is_valu = op.startswith("v_")
        is_mfma = op.startswith("v_mfma")
        is_ds = op.startswith("ds_")
        is_vmem = op.startswith(("global_", "buffer_", "flat_"))
        is_dpp = "_dpp" in op or "row_" in mods or "quad_perm" in mods
        is_perml = op.startswith("v_permlane")
        is_rl = op.startswith(("v_readlane", "v_readfirstlane"))
        is_wl = op.startswith("v_writelane")
        dst, src = [], []
        if is_valu:
            if op.startswith("v_cmp"):
                dst = _regs(ops[0])
                if op.startswith("v_cmpx"):
                    dst = dst + [("s", "exec")]
                for o in ops[1:]:
                    src += _regs(o)
            elif is_perml:
                dst = _regs(ops[0]) + _regs(ops[1])
                src = list(dst)
            elif op.startswith(("v_add_co", "v_sub_co", "v_addc_co", "v_subb_co")):
                dst = _regs(ops[0]) + _regs(ops[1])
                for o in ops[2:]:
                    src += _regs(o)
            else:
                dst = _regs(ops[0])
                for o in ops[1:]:
                    src += _regs(o)
                if op.startswith(("v_fmac", "v_mac", "v_dot2c", "v_pk_fmac")) or is_dpp or is_wl:
                    src += dst
                if op.startswith("v_cndmask") and len(ops) == 3:
                    src += [("s", "vcc")]
        elif is_ds:
            if op.startswith(("ds_read", "ds_bpermute", "ds_permute", "ds_swizzle")) or "_rtn" in op:
                dst = _regs(ops[0])
                for o in ops[1:]:
                    src += _regs(o)
            else:
                for o in ops:
                    src += _regs(o)
        elif is_vmem:
            if "load" in op and "lds" not in op and " lds" not in mods:
                dst = _regs(ops[0])
                for o in ops[1:]:
                    src += _regs(o)
            else:
                for o in ops:
                    src += _regs(o)
        else:
            if op.startswith(("s_cmp", "s_cbranch", "s_branch", "s_waitcnt", "s_nop", "s_barrier", "s_endpgm", "s_sleep", "s_setprio", "s_bitcmp")):
                for o in ops:
                    src += _regs(o)
            else:
                dst = _regs(ops[0]) if ops else []
                for o in ops[1:]:
                    src += _regs(o)

        for r in src:
            if r[0] == "v" and r[1] in self.vw:
                t0, kind = self.vw[r[1]]
                if kind == "mfma":
                    if is_mfma:
                        cregs = _regs(ops[3])
                        if r in cregs and cregs == self.vw_mfma_d.get(r[1]) and r not in _regs(ops[1]) + _regs(ops[2]):
                            pass
                        else:
                            req(t0, 8)
                    else:
                        req(t0, 8)
                else:
                    if is_mfma:
                        req(t0, 2)
                    if is_dpp or is_perml:
                        req(t0, 2)
                    if is_rl:
                        req(t0, 1)
                    if kind == "trans" and is_valu and not op.startswith(TRANS):
                        req(t0, 1)
                    if kind == "trans" and not is_valu:
                        req(t0, 1)
            if r[0] == "s" and r[1] in self.sw:
                t0 = self.sw[r[1]]
                if is_vmem:
                    req(t0, 5)
                elif is_valu:
                    req(t0, 4 if (is_rl or is_wl) else 2)
                else:
                    req(t0, 1)
        for r in dst:
            if r[0] == "v":
                if r[1] in self.vw and self.vw[r[1]][1] == "mfma" and not is_mfma:
                    req(self.vw[r[1]][0], 8)
                if r[1] in self.vw and self.vw[r[1]][1] == "mfma" and is_mfma and _regs(ops[3]) != _regs(ops[0]):
                    req(self.vw[r[1]][0], 8)
                if r[1] in self.stdata:
                    req(self.stdata[r[1]], 2)
                if r[1] in self.mfc and is_valu and not is_mfma:
                    req(self.mfc[r[1]], 3)
        if (is_vmem and ("lds" in op or " lds" in mods)) or op.startswith("s_movrel"):
            req(self.m0w, 1)
        if is_valu and (is_dpp or is_perml or is_rl or is_wl or is_mfma):
            req(self.execw, 5)
        if need > self.t:
            n = need - self.t
            self.nops += n
            while n > 0:
                k = min(n, 16)
                self.out.append(f"    s_nop {k-1}")
                self.t += k
                n -= k
        self.out.append("    " + line)
        now = self.t
        if op == "s_nop":
            self.t += int(ops[0]) + 1
        else:
            self.t += 1
        if is_valu:
            for r in dst:
                if r[0] == "v":
                    kind = "mfma" if is_mfma else ("trans" if op.startswith(TRANS) else "valu")
                    self.vw[r[1]] = (now, kind)
                    if is_mfma:
                        self.vw_mfma_d[r[1]] = dst
                elif r[0] == "s":
                    self.sw[r[1]] = now
                    if r[1] == "exec":
                        self.execw = now
            if is_mfma:
                for r in _regs(ops[3]):
                    if r[0] == "v":
                        self.mfc[r[1]] = now
        else:
            for r in dst:
                if r[0] == "v":
                    self.vw.pop(r[1], None)
                elif r[0] == "s":
                    self.sw.pop(r[1], None)
                    if r[1] == "m0":
                        self.m0w = now
            if is_vmem and "store" in op and ("x3" in op or "x4" in op):
                for r in src:
                    if r[0] == "v":
                        self.stdata[r[1]] = now

    vw_mfma_d = {}

    def text(self):
        return "\n".join(self.out) + "\n"
```

```python
import sys
from asmlib import Asm

NAME = "adaLN_cond__sliding_block_cached__mixer_channel_mlp__decode"

WS_EPOCH = 0
WS_H1 = 0x1000
WS_H2 = 0x4000
WS_MR = 0x10000
WS_H3 = 0x20000
WS_H4 = WS_H3 + 256 * 640
WS_RESET_BYTES = 216 * 1024
WS_H5 = 0x80000
WS_STAMP = 0x200000
assert WS_H4 + 8 * 4608 <= WS_H3 + WS_RESET_BYTES <= WS_H5

L_W = 0
L_W2 = 73728
L_X1 = L_W2
L_MISC = L_W2 + 65536
L_OP = L_MISC
L_LS = L_OP + 12288
L_RED = L_LS + 128
L_ZERO = L_RED + 256
L_ZEND = L_OP + 13312
L_ACT = L_ZEND
L_PART = L_ACT + 2304
L_Q = L_PART + 4608
L_MX = L_Q + 512
L_HID = L_MX + 16
L_END = L_HID + 128
LDS_BYTES = (L_END + 255) // 256 * 256
assert LDS_BYTES <= 163840

R_MLP, R_Q, R_WO9, R_MOD = 0, 1, 2, 3

X, KC, VC, WQ, WO, W1, B1, W2, B2, C, WM, OUT, DBG, WS = (
    "s[16:17]", "s[18:19]", "s[20:21]", "s[22:23]", "s[24:25]", "s[28:29]", "s[30:31]", "s[32:33]",
    "s[34:35]", "s[36:37]", "s[38:39]", "s[40:41]", "s[42:43]", "s[44:45]")


def lo(p):
    return "s" + p[2:].split(":")[0]


def hi(p):
    return "s" + p.split(":")[1][:-1]


sWAVE, sX, sJ, sROLE, sIDX, sGS, sGC, sTAG = "s3", "s4", "s5", "s6", "s7", "s8", "s9", "s10"
sAW = "s11"
sU = "s12"
sTO = "s13"
sT0, sT1 = "s14", "s15"
TB = "s[46:47]"
TB2 = "s[48:49]"
SAVE = "s[50:51]"
sPLO, sPHI = "s52", "s53"
sHI16 = "s54"
sEP = "s55"
LOG2E = 0x3fb8aa3b
TIMEOUT = 1 << 19


def default_table():
    t1 = lambda q0, m0, X_: [(R_MLP, m0 + i) for i in range(5)] + [(R_Q, q0), (R_Q, q0 + 1), X_]
    t2 = lambda q0, m0, Xa, Xb: [(R_MLP, m0 + i) for i in range(4)] + [(R_Q, q0), (R_Q, q0 + 1), Xa, Xb]
    roles = (t1(0, 0, (R_MOD, 0)) + t1(2, 5, (R_MOD, 1)) +
             t2(4, 10, (R_MOD, 2), (R_WO9, 8)) + t2(6, 14, (R_MOD, 3), (R_MOD, 4)))
    counts = ([11, 11, 11, 11, 11, 3, 3, 3] * 2 +
              [12, 12, 12, 12, 3, 3, 3, 7] +
              [12, 12, 12, 12, 5, 5, 3, 3])
    return roles, counts


def gen(profile=False, table=None):
    a = Asm()
    roles, counts = table or default_table()
    ent = []
    for p in range(4):
        gs = 0
        for part in range(8):
            j = 8 * p + part
            role, idx = roles[j]
            cnt = counts[j]
            assert 1 <= cnt <= 12
            if role == R_MOD:
                assert cnt <= 3
            ent.append(gs | (cnt << 6) | (role << 10) | ((idx & 15) << 12))
            gs += cnt
        assert gs == 64, (p, gs)
    nstamp = [0]

    def stamp(k):
        if profile:
            a(f"s_memrealtime s[{80+2*k}:{81+2*k}]")
            a("s_waitcnt lgkmcnt(0)")

    def addbase(dst, src, off_s):
        a(f"s_add_u32 {lo(dst)}, {lo(src)}, {off_s}")
        a(f"s_addc_u32 {hi(dst)}, {hi(src)}, 0")

    def bf16r2(d0, d1, s0, s1, tmp):
        a(f"v_cvt_pk_bf16_f32 {tmp}, {s0}, {s1}")
        a(f"v_lshlrev_b32 {d0}, 16, {tmp}")
        a(f"v_and_b32 {d1}, {sHI16}, {tmp}")

    def half_reduce(regs, tmp):
        for sh in (8, 4, 2, 1):
            for r in regs:
                a(f"v_add_f32_dpp {r}, {r}, {r} row_ror:{sh} row_mask:0xf bank_mask:0xf")
        for r, t in zip(regs, tmp):
            a(f"v_mov_b32 {t}, {r}")
        for r, t in zip(regs, tmp):
            a(f"v_permlane16_swap_b32 {r}, {t}")
        for r, t in zip(regs, tmp):
            a(f"v_add_f32 {r}, {r}, {t}")

    def dma_block(base, ldsbase_s, n, rows_per, stride, voff):
        for i in range(n):
            if i % 4 == 0:
                if i == 0:
                    a(f"s_mov_b32 m0, {ldsbase_s}")
                else:
                    a(f"s_add_u32 m0, {ldsbase_s}, {i*1024}")
                    a(f"v_add_u32 {voff}, {rows_per*stride + 3*1024}, {voff}")
            else:
                a(f"v_add_u32 {voff}, {rows_per*stride - 1024}, {voff}")
            a(f"global_load_lds_dwordx4 {voff}, {base} offset:{(i % 4)*1024} nt")

    def lane_off(v, rb, stride):
        lpr = rb // 16
        a(f"v_lshrrev_b32 {v}, {lpr.bit_length()-1}, v1")
        a(f"v_mul_u32_u24 {v}, {stride}, {v}")
        a(f"v_and_b32 v7, {lpr-1}, v1")
        a(f"v_lshl_add_u32 {v}, v7, 4, {v}")

    def tr_addr(v, rb, base_s):
        a(f"v_bfe_u32 v7, v1, 2, 2")
        a(f"v_lshl_add_u32 {v}, v3, 3, v7")
        a(f"v_lshlrev_b32 {v}, {rb.bit_length()-1}, {v}")
        a(f"v_and_b32 v7, 3, v1")
        a(f"v_lshl_add_u32 {v}, v7, 3, {v}")
        a(f"v_add_u32 {v}, {base_s}, {v}")

    def tr_reads(vaddr, rb, ksteps, ntiles, b0):
        for s in range(ksteps):
            for t in range(ntiles):
                r = b0 + 4 * (s * ntiles + t)
                for hf in range(2):
                    a(f"ds_read_b64_tr_b16 v[{r+2*hf}:{r+2*hf+1}], {vaddr} offset:{(32*s+4*hf)*rb + 32*t}")

    def act_addr(v):
        a(f"v_and_b32 v7, 1, v1")
        a(f"v_mul_u32_u24 {v}, 1152, v7")
        a(f"v_lshl_add_u32 {v}, v3, 4, {v}")
        a(f"s_lshl_b32 {sT0}, {sWAVE}, 7")
        a(f"s_add_u32 {sT0}, {sT0}, {L_ACT}")
        a(f"v_add_u32 {v}, {sT0}, {v}")

    def gemv_mfma(ntiles, b0, a0, acc0, form):
        for s in range(2):
            for t in range(ntiles):
                w = f"v[{b0+4*(s*ntiles+t)}:{b0+4*(s*ntiles+t)+3}]"
                ac = f"v[{a0+4*s}:{a0+4*s+3}]"
                d = f"v[{acc0+4*t}:{acc0+4*t+3}]"
                cc = d if s else "0"
                if form == 1:
                    a(f"v_mfma_f32_16x16x32_bf16 {d}, {ac}, {w}, {cc}")
                else:
                    a(f"v_mfma_f32_16x16x32_bf16 {d}, {w}, {ac}, {cc}")

    def part_addr(v, ncols, form):
        a(f"s_mul_i32 {sT0}, {sWAVE}, {ncols*8}")
        a(f"s_add_u32 {sT0}, {sT0}, {L_PART}")
        if form == 1:
            a(f"v_lshlrev_b32 {v}, 3, v2")
        else:
            a(f"v_mul_u32_u24 {v}, {ncols*4}, v2")
            a(f"v_lshl_add_u32 {v}, v3, 4, {v}")
        a(f"v_add_u32 {v}, {sT0}, {v}")

    def part_write(v, ntiles, acc0, form):
        if form == 1:
            a("s_mov_b64 exec, 0xffff")
            for t in range(ntiles):
                a(f"ds_write_b64 {v}, v[{acc0+4*t}:{acc0+4*t+1}] offset:{128*t}")
        else:
            a("s_mov_b32 exec_lo, 0x00030003")
            a("s_mov_b32 exec_hi, 0x00030003")
            for t in range(ntiles):
                a(f"ds_write_b128 {v}, v[{acc0+4*t}:{acc0+4*t+3}] offset:{64*t}")
        a("s_mov_b64 exec, -1")

    def reduce9_b64(ncols, r0):
        a(f"v_lshlrev_b32 v4, 3, v1")
        a(f"v_add_u32 v4, {L_PART}, v4")
        for w in range(9):
            a(f"ds_read_b64 v[{r0+2*w}:{r0+2*w+1}], v4 offset:{w*ncols*8}")
        a("s_waitcnt lgkmcnt(0)")
        for (d, s) in ((0, 1), (2, 3), (4, 5), (6, 7), (0, 2), (4, 6), (0, 8), (0, 4)):
            a(f"v_pk_add_f32 v[{r0+2*d}:{r0+2*d+1}], v[{r0+2*d}:{r0+2*d+1}], v[{r0+2*s}:{r0+2*s+1}]")

    def poll_tail(lbl):
        a(f"s_cbranch_vccz {lbl}_ok")
        a("s_mov_b64 exec, vcc")
        a(f"s_sub_u32 {sTO}, {sTO}, 1")
        a(f"s_cbranch_scc0 {lbl}")
        a("s_branch L_end")
        a.label(f"{lbl}_ok")

    def max_chain(dst, regs):
        a(f"v_max3_u32 {dst}, {regs[0]}, {regs[1]}, {regs[2]}")
        rest = regs[3:]
        while len(rest) >= 2:
            a(f"v_max3_u32 {dst}, {dst}, {rest[0]}, {rest[1]}")
            rest = rest[2:]
        if rest:
            a(f"v_max_u32 {dst}, {dst}, {rest[0]}")

    def get_tag():
        a("s_waitcnt lgkmcnt(0)")
        a(f"s_mul_i32 {sTAG}, {sEP}, 1664525")
        a(f"s_add_u32 {sTAG}, {sTAG}, 1013904223")

    a("s_cmp_ge_u32 s2, 256")
    a("s_cbranch_scc1 L_exit")
    stamp(0)
    a("s_load_dwordx16 s[16:31], s[0:1], 0")
    a("s_load_dwordx8 s[32:39], s[0:1], 64")
    a("s_load_dwordx4 s[40:43], s[0:1], 96")
    a("s_load_dwordx2 s[44:45], s[0:1], 112")
    a("v_lshrrev_b32 v4, 6, v0")
    a("v_and_b32 v1, 63, v0")
    a(f"v_readfirstlane_b32 {sWAVE}, v4")
    a("v_and_b32 v2, 15, v0")
    a("v_bfe_u32 v3, v0, 4, 2")
    for i in range(16):
        a(f"s_mov_b32 s{64+i}, 0x{(ent[2*i] | (ent[2*i+1] << 16)):08x}")
    a(f"s_and_b32 {sX}, s2, 7")
    a(f"s_lshr_b32 {sJ}, s2, 3")
    a(f"s_lshr_b32 m0, s2, 4")
    a(f"s_and_b32 {sT1}, {sJ}, 1")
    a(f"s_movrels_b32 {sT0}, s64")
    a(f"s_lshl_b32 {sT1}, {sT1}, 4")
    a(f"s_lshr_b32 {sT0}, {sT0}, {sT1}")
    a(f"s_and_b32 {sGS}, {sT0}, 63")
    a(f"s_bfe_u32 {sGC}, {sT0}, 0x40006")
    a(f"s_bfe_u32 {sROLE}, {sT0}, 0x2000a")
    a(f"s_bfe_u32 {sIDX}, {sT0}, 0x4000c")
    a(f"s_sub_u32 {sAW}, 11, {sWAVE}")
    a(f"s_mov_b32 {sPLO}, 0x05040100")
    a(f"s_mov_b32 {sPHI}, 0x07060302")
    a(f"s_mov_b32 {sHI16}, 0xffff0000")
    a(f"s_mov_b32 {sTO}, {TIMEOUT}")
    a("v_mov_b32 v8, 0")
    a("v_mov_b32 v9, 0")
    a("v_mov_b32 v10, 0")
    a("v_mov_b32 v11, 0")
    a("v_lshlrev_b32 v4, 4, v0")
    a(f"v_add_u32 v4, {L_OP}, v4")
    a(f"s_cmp_ge_u32 {sWAVE}, 13")
    a("s_cbranch_scc1 L_init2")
    a("ds_write_b128 v4, v[8:11]")
    a("s_branch L_init3")
    a.label("L_init2")
    a("v_mov_b32 v8, 0xff7fffff")
    a("v_mov_b32 v9, 0xff7fffff")
    a(f"v_mov_b32 v4, {L_MX}")
    a("ds_write_b64 v4, v[8:9]")
    a.label("L_init3")
    a("s_waitcnt lgkmcnt(0)")
    a(f"s_load_dword {sEP}, {WS}, {WS_EPOCH}")
    a(f"s_cmp_eq_u32 {sROLE}, {R_MLP}")
    a("s_cbranch_scc1 L_front_mlp")
    a(f"s_cmp_eq_u32 {sROLE}, {R_Q}")
    a("s_cbranch_scc1 L_front_q")
    a(f"s_cmp_eq_u32 {sROLE}, {R_WO9}")
    a("s_cbranch_scc1 L_front_wo")

    a.c("MOD: unit u = (k>>1)*16 + 2x + (k&1) for k<4 ; 32+x for k==4 (x<4)")
    a(f"s_lshr_b32 {sT0}, {sIDX}, 1")
    a(f"s_lshl_b32 {sT0}, {sT0}, 4")
    a(f"s_and_b32 {sT1}, {sIDX}, 1")
    a(f"s_add_u32 {sU}, {sT0}, {sT1}")
    a(f"s_add_u32 {sU}, {sU}, {sX}")
    a(f"s_cmp_eq_u32 {sIDX}, 4")
    a(f"s_cselect_b32 {sT0}, 0, {sX}")
    a(f"s_add_u32 {sU}, {sU}, {sT0}")
    a(f"s_cmp_ge_u32 {sU}, 36")
    a("s_cbranch_scc1 L_attn_issue")
    a(f"s_cmp_ge_u32 {sWAVE}, 14")
    a("s_cbranch_scc1 L_mod_reset")
    a(f"s_cmp_ge_u32 {sWAVE}, 9")
    a("s_cbranch_scc1 L_mod_silu")
    a(f"s_mul_i32 {sT0}, {sWAVE}, {64*6912}")
    a(f"s_lshl_b32 {sT1}, {sU}, 6")
    a(f"s_add_u32 {sT0}, {sT0}, {sT1}")
    addbase(TB, WM, sT0)
    lane_off("v4", 64, 6912)
    a(f"s_lshl_b32 {sT1}, {sWAVE}, 12")
    a(f"s_add_u32 {sT1}, {sT1}, {L_W2}")
    dma_block(TB, sT1, 4, 16, 6912, "v4")
    tr_addr("v5", 64, sT1)
    act_addr("v6")
    part_addr("v8", 32, 1)
    a("s_barrier")
    a("ds_read_b128 v[16:19], v6")
    a("ds_read_b128 v[20:23], v6 offset:64")
    a("s_waitcnt vmcnt(0)")
    stamp(1)
    tr_reads("v5", 64, 2, 2, 24)
    a("s_waitcnt lgkmcnt(0)")
    gemv_mfma(2, 24, 16, 56, 1)
    part_write("v8", 2, 56, 1)
    a("s_waitcnt lgkmcnt(0)")
    a("s_barrier")
    a(f"s_cmp_lg_u32 {sWAVE}, 0")
    a("s_cbranch_scc1 L_mod_pub_done")
    reduce9_b64(32, 24)
    get_tag()
    a("v_cvt_pk_bf16_f32 v24, v24, v25")
    a(f"v_mov_b32 v25, {sTAG}")
    a(f"s_lshl_b32 {sT0}, {sU}, 8")
    a(f"s_add_u32 {sT0}, {sT0}, {WS_H1}")
    a(f"v_lshl_add_u32 v4, v1, 3, {sT0}")
    a("s_mov_b32 exec_hi, 0")
    a(f"global_store_dwordx2 v4, v[24:25], {WS} sc1")
    a("s_mov_b64 exec, -1")
    stamp(2)
    a.label("L_mod_pub_done")
    a("s_barrier")
    a(f"s_mul_i32 {sT0}, {sWAVE}, {64*6912}")
    a(f"s_lshl_b32 {sT1}, {sU}, 7")
    a(f"s_add_u32 {sT0}, {sT0}, {sT1}")
    a(f"s_add_u32 {sT0}, {sT0}, 2304")
    addbase(TB, WM, sT0)
    lane_off("v4", 128, 6912)
    a(f"s_lshl_b32 {sT1}, {sWAVE}, 13")
    dma_block(TB, sT1, 8, 8, 6912, "v4")
    tr_addr("v5", 128, sT1)
    part_addr("v8", 64, 1)
    a("s_waitcnt vmcnt(0)")
    tr_reads("v5", 128, 2, 4, 24)
    a("s_waitcnt lgkmcnt(0)")
    gemv_mfma(4, 24, 16, 56, 1)
    part_write("v8", 4, 56, 1)
    a("s_waitcnt lgkmcnt(0)")
    a("s_barrier")
    a(f"s_cmp_lg_u32 {sWAVE}, 0")
    a("s_cbranch_scc1 L_attn_wait")
    reduce9_b64(64, 24)
    a("v_cvt_pk_bf16_f32 v24, v24, v25")
    a("v_min_u32 v24, -2, v24")
    a(f"s_lshl_b32 {sT0}, {sU}, 8")
    a(f"s_add_u32 {sT0}, {sT0}, {WS_MR}")
    a(f"v_lshl_add_u32 v4, v1, 2, {sT0}")
    a(f"global_store_dword v4, v24, {WS} sc1")
    stamp(3)
    a("s_branch L_attn_wait")

    a.label("L_mod_silu")
    a("v_subrev_u32 v4, 576, v0")
    a("v_cmp_gt_u32 vcc, 288, v4")
    a("s_mov_b64 exec, vcc")
    a("v_lshlrev_b32 v4, 3, v4")
    a(f"global_load_dwordx2 v[8:9], v4, {C}")
    a(f"s_mov_b32 {sT0}, 0x{LOG2E ^ 0x80000000:08x}")
    a("s_waitcnt vmcnt(0)")
    a("v_lshlrev_b32 v10, 16, v8")
    a(f"v_and_b32 v11, {sHI16}, v8")
    a("v_lshlrev_b32 v12, 16, v9")
    a(f"v_and_b32 v13, {sHI16}, v9")
    for i in range(4):
        a(f"v_mul_f32 v{16+i}, {sT0}, v{10+i}")
    for i in range(4):
        a(f"v_exp_f32 v{16+i}, v{16+i}")
    for i in range(4):
        a(f"v_add_f32 v{16+i}, 1.0, v{16+i}")
    for i in range(4):
        a(f"v_rcp_f32 v{16+i}, v{16+i}")
    for i in range(4):
        a(f"v_mul_f32 v{16+i}, v{16+i}, v{10+i}")
    a("v_cvt_pk_bf16_f32 v8, v16, v17")
    a("v_cvt_pk_bf16_f32 v9, v18, v19")
    a(f"v_add_u32 v4, {L_ACT}, v4")
    a("ds_write_b64 v4, v[8:9]")
    a("s_mov_b64 exec, -1")
    a("s_waitcnt lgkmcnt(0)")
    a("s_branch L_mod_bars")

    a.label("L_mod_reset")
    a("v_mov_b32 v8, -1")
    a("v_mov_b32 v9, -1")
    a("v_mov_b32 v10, -1")
    a("v_mov_b32 v11, -1")
    a(f"s_lshl_b32 {sT0}, {sU}, 1")
    a(f"s_add_u32 {sT0}, {sT0}, {sWAVE}")
    a(f"s_sub_u32 {sT0}, {sT0}, 14")
    a(f"s_mul_i32 {sT0}, {sT0}, 3072")
    a(f"s_add_u32 {sT0}, {sT0}, {WS_H3}")
    a(f"v_lshl_add_u32 v4, v1, 4, {sT0}")
    for i in range(3):
        a(f"global_store_dwordx4 v4, v[8:11], {WS} offset:{1024*i} sc1")
    a(f"s_lshl_b32 {sT0}, {sU}, 8")
    a(f"s_add_u32 {sT0}, {sT0}, {WS_MR}")
    a(f"v_lshl_add_u32 v4, v1, 2, {sT0}")
    a(f"global_store_dword v4, v8, {WS} sc1")
    a("s_barrier")
    a("s_waitcnt vmcnt(0)")
    a("s_branch L_mod_bars2")
    a.label("L_mod_bars")
    a("s_barrier")
    a.label("L_mod_bars2")
    a("s_barrier")
    a("s_barrier")
    a(f"s_mov_b32 {sU}, 100")
    a("s_branch L_attn_issue_mod")

    a.label("L_front_q")
    a(f"s_mov_b32 {sU}, {sIDX}")
    a(f"s_cmp_ge_u32 {sWAVE}, 14")
    a("s_cbranch_scc1 L_q_bars")
    a(f"s_cmp_ge_u32 {sWAVE}, 9")
    a("s_cbranch_scc1 L_q_h")
    a(f"s_lshl_b32 {sT0}, {sWAVE}, 19")
    a(f"s_lshl_b32 {sT1}, {sX}, 10")
    a(f"s_add_u32 {sT0}, {sT0}, {sT1}")
    a(f"s_lshl_b32 {sT1}, {sIDX}, 7")
    a(f"s_add_u32 {sT0}, {sT0}, {sT1}")
    addbase(TB, WQ, sT0)
    lane_off("v4", 128, 8192)
    a(f"s_lshl_b32 {sT1}, {sWAVE}, 13")
    dma_block(TB, sT1, 8, 8, 8192, "v4")
    tr_addr("v5", 128, sT1)
    act_addr("v6")
    part_addr("v8", 64, 2)
    a("s_waitcnt vmcnt(0)")
    stamp(1)
    tr_reads("v5", 128, 2, 4, 24)
    a("s_waitcnt lgkmcnt(0)")
    a("s_barrier")
    a("ds_read_b128 v[16:19], v6")
    a("ds_read_b128 v[20:23], v6 offset:64")
    a("s_waitcnt lgkmcnt(0)")
    gemv_mfma(4, 24, 16, 56, 2)
    part_write("v8", 4, 56, 2)
    a("s_waitcnt lgkmcnt(0)")
    a("s_barrier")
    a(f"s_cmp_lg_u32 {sWAVE}, 0")
    a("s_cbranch_scc1 L_q_b3")
    reduce9_b64(64, 24)
    get_tag()
    a("v_cvt_pk_bf16_f32 v24, v24, v25")
    a(f"v_mov_b32 v25, {sTAG}")
    a(f"s_lshl_b32 {sT0}, {sX}, 12")
    a(f"s_lshr_b32 {sT1}, {sIDX}, 2")
    a(f"s_lshl_b32 {sT1}, {sT1}, 11")
    a(f"s_add_u32 {sT0}, {sT0}, {sT1}")
    a(f"s_and_b32 {sT1}, {sIDX}, 3")
    a(f"s_lshl_b32 {sT1}, {sT1}, 8")
    a(f"s_add_u32 {sT0}, {sT0}, {sT1}")
    a(f"s_add_u32 {sT0}, {sT0}, {WS_H2}")
    a("v_lshrrev_b32 v4, 5, v1")
    a("v_lshlrev_b32 v4, 10, v4")
    a("v_and_b32 v5, 31, v1")
    a("v_lshl_add_u32 v4, v5, 3, v4")
    a(f"v_add_u32 v4, {sT0}, v4")
    a(f"global_store_dwordx2 v4, v[24:25], {WS} sc1")
    stamp(3)
    a("s_branch L_q_b3")

    a.label("L_q_h")
    a("v_lshrrev_b32 v4, 5, v1")
    a("v_mul_u32_u24 v4, 1152, v4")
    a("v_and_b32 v5, 31, v1")
    a("v_mul_u32_u24 v5, 36, v5")
    a("v_add_u32 v4, v4, v5")
    for i in range(3):
        a(f"global_load_dwordx3 v[{16+4*i}:{18+4*i}], v4, {X} offset:{12*i}")
    a("v_subrev_u32 v6, 576, v0")
    a("v_min_u32 v5, 287, v6")
    a("v_lshlrev_b32 v5, 2, v5")
    a(f"global_load_dword v12, v5, {X}")
    a(f"global_load_dword v13, v5, {X} offset:1152")
    a("s_waitcnt vmcnt(2)")
    src = [16, 17, 18, 20, 21, 22, 24, 25, 26]
    for i, r in enumerate(src):
        a(f"v_lshlrev_b32 v{32+2*i}, 16, v{r}")
        a(f"v_and_b32 v{33+2*i}, {sHI16}, v{r}")
    a("v_add_f32 v8, v32, v33")
    for i in range(2, 18):
        a(f"v_add_f32 v8, v8, v{32+i}")
    half_reduce(["v8"], ["v9"])
    a(f"s_mov_b32 {sT0}, 0x3ae38e39")
    a(f"v_mul_f32 v8, {sT0}, v8")
    a("v_mov_b32 v10, 0")
    for i in range(18):
        a(f"v_sub_f32 v9, v{32+i}, v8")
        a("v_fmac_f32 v10, v9, v9")
    half_reduce(["v10"], ["v9"])
    a(f"v_mul_f32 v10, {sT0}, v10")
    bf16r2("v8", "v10", "v8", "v10", "v9")
    a("v_add_f32 v10, 0x3727c5ac, v10")
    bf16r2("v10", "v11", "v10", "v10", "v9")
    a("v_sqrt_f32 v10, v10")
    bf16r2("v10", "v11", "v10", "v10", "v9")
    a("v_rcp_f32 v10, v10")
    a("v_readlane_b32 s56, v8, 0")
    a("v_readlane_b32 s57, v8, 32")
    a("v_readlane_b32 s58, v10, 0")
    a("v_readlane_b32 s59, v10, 32")
    a("s_waitcnt vmcnt(0)")
    a("v_lshlrev_b32 v16, 16, v12")
    a(f"v_and_b32 v17, {sHI16}, v12")
    a("v_lshlrev_b32 v18, 16, v13")
    a(f"v_and_b32 v19, {sHI16}, v13")
    a("v_subrev_f32 v16, s56, v16")
    a("v_subrev_f32 v17, s56, v17")
    a("v_subrev_f32 v18, s57, v18")
    a("v_subrev_f32 v19, s57, v19")
    bf16r2("v16", "v17", "v16", "v17", "v9")
    bf16r2("v18", "v19", "v18", "v19", "v9")
    a("v_mul_f32 v16, s58, v16")
    a("v_mul_f32 v17, s58, v17")
    a("v_mul_f32 v18, s59, v18")
    a("v_mul_f32 v19, s59, v19")
    bf16r2("v16", "v17", "v16", "v17", "v9")
    bf16r2("v18", "v19", "v18", "v19", "v9")
    get_tag()
    a("v_cmp_gt_u32 vcc, 288, v6")
    a("s_mov_b64 exec, vcc")
    a(f"s_mov_b64 {SAVE}, vcc")
    a("v_lshlrev_b32 v4, 4, v6")
    a(f"v_add_u32 v4, {WS_H1}, v4")
    a(f"v_add_u32 v5, 4608, v4")
    a("v_lshlrev_b32 v6, 2, v6")
    a(f"v_add_u32 v6, {L_ACT}, v6")
    a.label("L_poll_h1")
    a(f"global_load_dwordx4 v[20:23], v4, {WS} sc1")
    a(f"global_load_dwordx4 v[24:27], v5, {WS} sc1")
    a("s_waitcnt vmcnt(0)")
    a(f"v_xor_b32 v8, {sTAG}, v21")
    a(f"v_xor_b32 v9, {sTAG}, v23")
    a(f"v_xor_b32 v10, {sTAG}, v25")
    a(f"v_xor_b32 v11, {sTAG}, v27")
    a("v_or3_b32 v8, v8, v9, v10")
    a("v_or_b32 v8, v8, v11")
    a("v_cmp_ne_u32 vcc, 0, v8")
    poll_tail("L_poll_h1")
    a(f"s_mov_b64 exec, {SAVE}")
    stamp(2)
    a("v_lshlrev_b32 v8, 16, v24")
    a("v_lshlrev_b32 v9, 16, v26")
    a(f"v_and_b32 v10, {sHI16}, v24")
    a(f"v_and_b32 v11, {sHI16}, v26")
    for i in range(4):
        a(f"v_add_f32 v{8+i}, 1.0, v{8+i}")
    bf16r2("v8", "v9", "v8", "v9", "v12")
    bf16r2("v10", "v11", "v10", "v11", "v13")
    for i in range(4):
        a(f"v_mul_f32 v{8+i}, v{8+i}, v{16+i}")
    bf16r2("v8", "v9", "v8", "v9", "v12")
    bf16r2("v10", "v11", "v10", "v11", "v13")
    a("v_lshlrev_b32 v16, 16, v20")
    a("v_lshlrev_b32 v17, 16, v22")
    a(f"v_and_b32 v18, {sHI16}, v20")
    a(f"v_and_b32 v19, {sHI16}, v22")
    for i in range(4):
        a(f"v_add_f32 v{8+i}, v{8+i}, v{16+i}")
    a("v_cvt_pk_bf16_f32 v8, v8, v9")
    a("v_cvt_pk_bf16_f32 v10, v10, v11")
    a("ds_write_b32 v6, v8")
    a("ds_write_b32 v6, v10 offset:1152")
    a("s_mov_b64 exec, -1")
    a("s_waitcnt lgkmcnt(0)")
    a.label("L_q_bars")
    a("s_barrier")
    a("s_barrier")
    a.label("L_q_b3")
    a("s_barrier")

    a.label("L_front_wo")
    a(f"s_mov_b32 {sU}, {sIDX}")
    a(f"s_lshl_b32 {sT0}, {sX}, 4")
    a(f"s_add_u32 {sT0}, {sT0}, {sWAVE}")
    a(f"s_mul_i32 {sT0}, {sT0}, {32*1152}")
    a(f"s_lshl_b32 {sT1}, {sU}, 7")
    a(f"s_add_u32 {sT0}, {sT0}, {sT1}")
    addbase(TB, WO, sT0)
    lane_off("v4", 128, 1152)
    a(f"s_lshl_b32 {sT1}, {sWAVE}, 12")
    a(f"s_add_u32 {sT1}, {sT1}, {L_W2}")
    dma_block(TB, sT1, 4, 8, 1152, "v4")
    a("s_branch L_attn_issue")

    a.label("L_front_mlp")
    a(f"s_cmp_ge_u32 {sJ}, 26")
    a(f"s_cselect_b32 {sT0}, 16, 0")
    a(f"s_add_u32 {sIDX}, {sIDX}, {sT0}")
    a(f"s_mul_i32 {sU}, {sX}, 18")
    a(f"s_add_u32 {sU}, {sU}, {sIDX}")
    a(f"s_cmp_lg_u32 {sWAVE}, 14")
    a("s_cbranch_scc1 L_attn_issue")
    a("v_mov_b32 v8, -1")
    a("v_mov_b32 v9, -1")
    a("v_mov_b32 v10, -1")
    a("v_mov_b32 v11, -1")
    a(f"s_mul_i32 {sT0}, {sU}, 4608")
    a(f"s_add_u32 {sT0}, {sT0}, {WS_H5 + 1024}")
    a(f"v_lshl_add_u32 v4, v1, 4, {sT0}")
    for i in range(4):
        a(f"global_store_dwordx4 v4, v[8:11], {WS} offset:{1024*(i-1)} sc1")
    a("s_mov_b32 exec_hi, 0")
    a(f"global_store_dwordx4 v4, v[8:11], {WS} offset:3072 sc1")
    a("s_mov_b64 exec, -1")
    a("s_waitcnt vmcnt(0)")

    a.label("L_attn_issue")
    a.label("L_attn_issue_mod")
    a(f"s_cmp_ge_u32 {sAW}, {sGC}")
    a("s_cbranch_scc1 L_attn_issued")
    a(f"s_bfe_u32 {sT0}, {sJ}, 0x10003")
    a(f"s_lshl_b32 {sT0}, {sT0}, 3")
    a(f"s_add_u32 {sT0}, {sT0}, {sX}")
    a(f"s_lshl_b32 {sT0}, {sT0}, 1")
    a(f"s_lshr_b32 {sT1}, {sJ}, 4")
    a(f"s_add_u32 {sT0}, {sT0}, {sT1}")
    a(f"s_lshl_b32 {sT0}, {sT0}, 21")
    a(f"s_add_u32 {sT1}, {sGS}, {sAW}")
    a(f"s_lshl_b32 {sT1}, {sT1}, 13")
    a(f"s_add_u32 {sT0}, {sT0}, {sT1}")
    a(f"s_add_u32 {sT0}, {sT0}, {(6144+16)*256}")
    addbase(TB, KC, sT0)
    addbase(TB2, VC, sT0)
    a("v_lshlrev_b32 v4, 8, v2")
    a("v_lshl_add_u32 v4, v3, 4, v4")
    a("v_lshlrev_b32 v5, 10, v3")
    a("v_lshl_add_u32 v5, v2, 4, v5")
    for t in range(2):
        for kk in range(4):
            r = 16 + 4 * (4 * t + kk)
            a(f"global_load_dwordx4 v[{r}:{r+3}], v4, {TB} offset:{(t-1)*4096 + 64*kk} nt")
    for t in range(2):
        for rr in range(4):
            r = 48 + 4 * (4 * t + rr)
            a(f"global_load_dwordx4 v[{r}:{r+3}], v5, {TB2} offset:{(t-1)*4096 + 256*rr} nt")
    a.label("L_attn_issued")
    a(f"s_cmp_lg_u32 {sU}, 100")
    a("s_cbranch_scc1 L_attn_wait")
    a(f"s_cmp_lg_u32 {sROLE}, {R_MOD}")
    a("s_cbranch_scc1 L_attn_wait")
    a("s_barrier")
    a.label("L_attn_wait")
    a(f"s_cmp_lg_u32 {sWAVE}, 15")
    a("s_cbranch_scc1 L_bq")
    get_tag()
    a(f"s_lshl_b32 {sT0}, {sX}, 12")
    a(f"s_lshr_b32 {sT1}, {sJ}, 3")
    a(f"s_lshl_b32 {sT1}, {sT1}, 10")
    a(f"s_add_u32 {sT0}, {sT0}, {sT1}")
    a(f"s_add_u32 {sT0}, {sT0}, {WS_H2}")
    a(f"v_lshl_add_u32 v4, v1, 4, {sT0}")
    a("v_lshlrev_b32 v5, 3, v1")
    a(f"v_add_u32 v5, {L_Q}, v5")
    a("s_setprio 3")
    a.label("L_poll_q")
    a(f"global_load_dwordx4 v[8:11], v4, {WS} sc1")
    a("s_waitcnt vmcnt(0)")
    a(f"v_xor_b32 v6, {sTAG}, v9")
    a(f"v_xor_b32 v7, {sTAG}, v11")
    a("v_or_b32 v6, v6, v7")
    a("v_cmp_ne_u32 vcc, 0, v6")
    poll_tail("L_poll_q")
    a("s_mov_b64 exec, -1")
    a("v_mov_b32 v9, v10")
    a("ds_write_b64 v5, v[8:9]")
    a("s_setprio 0")
    a("s_waitcnt lgkmcnt(0)")
    a.label("L_bq")
    a("s_barrier")
    stamp(4)

    def wo_tr(lbl):
        a(f"s_sub_u32 {sT0}, {sROLE}, 1")
        a(f"s_cmp_ge_u32 {sT0}, 2")
        a(f"s_cbranch_scc1 {lbl}")
        a(f"s_lshl_b32 {sT1}, {sWAVE}, 12")
        a(f"s_add_u32 {sT1}, {sT1}, {L_W2}")
        tr_addr("v6", 128, sT1)
        tr_reads("v6", 128, 1, 4, 112)
        a.label(lbl)

    a(f"s_cmp_lt_u32 {sAW}, {sGC}")
    a("s_cbranch_scc1 L_qk")
    a("s_waitcnt vmcnt(0)")
    wo_tr("L_wotr1")
    a("s_barrier")
    a("s_branch L_bo")

    a.label("L_qk")
    a("v_bfe_u32 v6, v1, 2, 1")
    a("v_lshlrev_b32 v4, 8, v6")
    a("v_lshl_add_u32 v4, v3, 4, v4")
    a(f"v_add_u32 v4, {L_Q}, v4")
    for kk in range(4):
        a(f"ds_read_b128 v[{80+4*kk}:{83+4*kk}], v4 offset:{64*kk}")
    a(f"v_lshlrev_b32 v5, 2, v6")
    a(f"v_add_u32 v5, {L_MX}, v5")
    a(f"s_mov_b32 {sT0}, 0x3db504f3")
    a("s_waitcnt vmcnt(8) lgkmcnt(0)")
    for kk in range(4):
        for t in range(2):
            r = 16 + 4 * (4 * t + kk)
            d = f"v[{8+4*t}:{11+4*t}]"
            a(f"v_mfma_f32_16x16x32_bf16 {d}, v[{r}:{r+3}], v[{80+4*kk}:{83+4*kk}], {d if kk else '0'}")
    for i in range(4):
        bf16r2(f"v{8+2*i}", f"v{9+2*i}", f"v{8+2*i}", f"v{9+2*i}", f"v{96+i}")
    for i in range(8):
        a(f"v_mul_f32 v{8+i}, {sT0}, v{8+i}")
    for i in range(4):
        bf16r2(f"v{8+2*i}", f"v{9+2*i}", f"v{8+2*i}", f"v{9+2*i}", f"v{96+i}")
    a("v_max3_f32 v7, v8, v9, v10")
    a("v_max3_f32 v7, v7, v11, v12")
    a("v_max3_f32 v7, v7, v13, v14")
    a("v_max_f32 v7, v7, v15")
    a("s_mov_b32 exec_lo, 0x00110011")
    a("s_mov_b32 exec_hi, 0x00110011")
    a("ds_max_f32 v5, v7")
    a("s_mov_b64 exec, -1")
    a("s_waitcnt lgkmcnt(0)")
    a("s_barrier")
    a("ds_read_b32 v7, v5")
    a(f"s_mov_b32 {sT0}, 0x{LOG2E:08x}")
    a(f"s_lshl_b32 {sT1}, {sAW}, 2")
    a(f"s_add_u32 {sT1}, {sT1}, {L_LS}")
    a(f"v_lshl_add_u32 v5, v6, 6, {sT1}")
    a("s_waitcnt lgkmcnt(0)")
    a(f"v_mul_f32 v7, {sT0}, v7")
    for i in range(8):
        a(f"v_fma_f32 v{8+i}, v{8+i}, {sT0}, -v7")
    for i in range(8):
        a(f"v_exp_f32 v{8+i}, v{8+i}")
    a("v_add_f32 v7, v8, v9")
    a("v_add_f32 v4, v10, v11")
    a("v_add_f32 v7, v7, v12")
    a("v_add_f32 v4, v4, v13")
    a("v_add_f32 v7, v7, v14")
    a("v_add_f32 v4, v4, v15")
    a("v_add_f32 v7, v7, v4")
    for i in range(4):
        a(f"v_cvt_pk_bf16_f32 v{8+i}, v{8+2*i}, v{9+2*i}")
    a("v_mov_b32 v4, v7")
    a("v_permlane16_swap_b32 v7, v4")
    a("v_add_f32 v7, v7, v4")
    a("v_mov_b32 v4, v7")
    a("v_permlane32_swap_b32 v7, v4")
    a("v_add_f32 v7, v7, v4")
    a("s_mov_b64 exec, 0x11")
    a("ds_write_b32 v5, v7")
    a("s_mov_b64 exec, -1")
    wo_tr("L_wotr2")
    a("v_and_b32 v4, 1, v3")
    a("v_lshlrev_b32 v4, 9, v4")
    a("v_lshl_add_u32 v4, v2, 5, v4")
    a("v_lshrrev_b32 v5, 1, v3")
    a("v_lshl_add_u32 v4, v5, 4, v4")
    a(f"s_lshl_b32 {sT1}, {sAW}, 10")
    a(f"s_add_u32 {sT1}, {sT1}, {L_OP}")
    a(f"v_add_u32 v4, {sT1}, v4")
    a("v_cmp_lt_u32 vcc, 31, v1")
    stamp(5)
    for d in range(4):
        a(f"s_waitcnt vmcnt({6-2*d})")
        for jj in range(4):
            r0 = 48 + 4 * (2 * d) + jj
            r1 = 48 + 4 * (2 * d + 1) + jj
            a(f"v_perm_b32 v{80+4*(2*jj)+d}, v{r1}, v{r0}, {sPLO}")
            a(f"v_perm_b32 v{80+4*(2*jj+1)+d}, v{r1}, v{r0}, {sPHI}")
    stamp(6)
    for e in range(8):
        a(f"v_mfma_f32_16x16x32_bf16 v[{16+4*e}:{19+4*e}], v[8:11], v[{80+4*e}:{83+4*e}], 0")
    for cix in range(4):
        a(f"v_cndmask_b32 v{12+cix}, v{16+4*cix}, v{32+4*cix}, vcc")
    a("ds_write_b128 v4, v[12:15]")
    a.label("L_bo")
    a("s_waitcnt lgkmcnt(0)")
    a("s_barrier")
    a(f"s_sub_u32 {sT0}, {sWAVE}, 12")
    a(f"s_cmp_ge_u32 {sT0}, 2")
    a("s_cbranch_scc1 L_bpub")
    a(f"s_lshl_b32 {sT1}, {sT0}, 9")
    a(f"s_add_u32 {sT1}, {sT1}, {L_OP}")
    a(f"v_lshl_add_u32 v4, v1, 3, {sT1}")
    for w in range(12):
        a(f"ds_read_b64 v[{16+2*w}:{17+2*w}], v4 offset:{1024*w}")
    a(f"s_lshl_b32 {sT1}, {sT0}, 6")
    a(f"s_add_u32 {sT1}, {sT1}, {L_LS}")
    a(f"v_mov_b32 v5, {sT1}")
    for i in range(3):
        a(f"ds_read_b128 v[{40+4*i}:{43+4*i}], v5 offset:{16*i}")
    a(f"s_lshl_b32 {sT1}, {sT0}, 2")
    a(f"s_add_u32 {sT1}, {sT1}, {L_MX}")
    a(f"v_mov_b32 v5, {sT1}")
    a("ds_read_b32 v8, v5")
    a(f"s_lshl_b32 {sT1}, {sX}, 5")
    a(f"s_add_u32 {sT1}, {sT1}, {sJ}")
    a(f"s_mul_i32 {sT1}, {sT1}, 640")
    a(f"s_add_u32 {sT1}, {sT1}, {WS_H3}")
    a(f"s_lshl_b32 s56, {sT0}, 3")
    a(f"s_add_u32 s56, s56, {sT1}")
    a(f"v_mov_b32 v7, s56")
    a(f"s_lshl_b32 {sT0}, {sT0}, 8")
    a(f"s_add_u32 {sT1}, {sT1}, {sT0}")
    a(f"v_lshl_add_u32 v6, v1, 2, {sT1}")
    a("s_waitcnt lgkmcnt(0)")
    for (d, s) in ((0, 1), (2, 3), (4, 5), (0, 2), (0, 4)):
        a(f"v_pk_add_f32 v[{40+2*d}:{41+2*d}], v[{40+2*d}:{41+2*d}], v[{40+2*s}:{41+2*s}]")
    a("v_add_f32 v9, v40, v41")
    a("v_rcp_f32 v10, v9")
    for (d, s) in ((0, 1), (2, 3), (4, 5), (6, 7), (8, 9), (10, 11), (0, 2), (4, 6), (8, 10), (0, 4), (0, 8)):
        a(f"v_pk_add_f32 v[{16+2*d}:{17+2*d}], v[{16+2*d}:{17+2*d}], v[{16+2*s}:{17+2*s}]")
    a("v_mul_f32 v16, v16, v10")
    a("v_mul_f32 v17, v17, v10")
    a("v_cvt_pk_bf16_f32 v16, v16, v17")
    a("v_min_u32 v16, -2, v16")
    a("v_min_u32 v8, -2, v8")
    a("v_min_u32 v9, -2, v9")
    a(f"global_store_dword v6, v16, {WS} sc1")
    a("s_mov_b64 exec, 1")
    a(f"global_store_dwordx2 v7, v[8:9], {WS} offset:512 sc1")
    a("s_mov_b64 exec, -1")
    a.label("L_bpub")
    a("s_barrier")
    stamp(7)
    a(f"s_cmp_eq_u32 {sROLE}, {R_MLP}")
    a("s_cbranch_scc1 L_post_mlp")
    a(f"s_cmp_eq_u32 {sROLE}, {R_MOD}")
    a("s_cbranch_scc1 L_end")

    a(f"s_lshl_b32 {sT0}, {sX}, 1")
    a(f"s_lshr_b32 {sT1}, {sWAVE}, 3")
    a(f"s_add_u32 {sT0}, {sT0}, {sT1}")
    a(f"s_mul_i32 {sT0}, {sT0}, {16*640}")
    a(f"s_add_u32 {sT0}, {sT0}, {WS_H3}")
    a(f"s_bfe_u32 s56, {sWAVE}, 0x10002")
    a("v_lshlrev_b32 v5, 2, v3")
    a("v_xor_b32 v5, v5, v2")
    a("v_mul_u32_u24 v5, 640, v5")
    a("s_lshl_b32 s57, s56, 3")
    a(f"s_add_u32 s57, s57, {sT0}")
    a("v_add_u32 v5, s57, v5")
    a("v_mul_u32_u24 v4, 640, v2")
    a("v_lshl_add_u32 v4, v3, 4, v4")
    a(f"s_and_b32 {sT1}, {sWAVE}, 7")
    a(f"s_lshl_b32 {sT1}, {sT1}, 6")
    a(f"s_add_u32 {sT0}, {sT0}, {sT1}")
    a(f"v_add_u32 v4, {sT0}, v4")
    a(f"v_lshlrev_b32 v6, 4, v0")
    a(f"s_mov_b32 {sT0}, 0x{LOG2E:08x}")
    a.label("L_poll_h3")
    a(f"global_load_dwordx4 v[8:11], v4, {WS} sc1")
    a(f"global_load_dwordx2 v[12:13], v5, {WS} offset:512 sc1")
    a("s_waitcnt vmcnt(0)")
    max_chain("v7", ["v8", "v9", "v10", "v11", "v12", "v13"])
    a("v_cmp_eq_u32 vcc, -1, v7")
    poll_tail("L_poll_h3")
    a("s_mov_b64 exec, -1")
    stamp(8)
    for t in range(4):
        a(f"v_mfma_f32_16x16x32_bf16 v[{16+4*t}:{19+4*t}], v[8:11], v[{112+4*t}:{115+4*t}], 0")
    a("v_max_f32_dpp v14, v12, v12 quad_perm:[1,0,3,2] row_mask:0xf bank_mask:0xf")
    a("v_max_f32_dpp v14, v14, v14 quad_perm:[2,3,0,1] row_mask:0xf bank_mask:0xf")
    a("v_max_f32_dpp v14, v14, v14 row_half_mirror row_mask:0xf bank_mask:0xf")
    a("v_sub_f32 v12, v12, v14")
    a(f"v_mul_f32 v12, {sT0}, v12")
    a("v_exp_f32 v12, v12")
    a("v_mul_f32 v12, v12, v13")
    a("v_add_f32_dpp v14, v12, v12 quad_perm:[1,0,3,2] row_mask:0xf bank_mask:0xf")
    a("v_add_f32_dpp v14, v14, v14 quad_perm:[2,3,0,1] row_mask:0xf bank_mask:0xf")
    a("v_add_f32_dpp v14, v14, v14 row_half_mirror row_mask:0xf bank_mask:0xf")
    a("v_rcp_f32 v14, v14")
    a("v_mul_f32 v12, v12, v14")
    for t in range(4):
        a(f"v_mul_f32_dpp v{32+t}, v12, v{16+4*t} row_newbcast:0 row_mask:0xf bank_mask:0xf")
    for r in range(1, 4):
        for t in range(4):
            a(f"v_fmac_f32_dpp v{32+t}, v12, v{16+4*t+r} row_newbcast:{r} row_mask:0xf bank_mask:0xf")
    a("ds_write_b128 v6, v[32:35]")
    a("s_waitcnt lgkmcnt(0)")
    a("s_barrier")
    a(f"s_cmp_ge_u32 {sWAVE}, 2")
    a("s_cbranch_scc1 L_end")
    a(f"s_lshl_b32 {sT0}, {sWAVE}, 9")
    a(f"v_lshl_add_u32 v4, v1, 2, {sT0}")
    for w in range(16):
        a(f"ds_read2st64_b32 v[{16+2*w}:{17+2*w}], v4 offset0:{4*w} offset1:{4*w+1}")
    a(f"s_mul_i32 {sT0}, {sX}, 4608")
    a(f"s_mul_i32 {sT1}, {sWAVE}, 2304")
    a(f"s_add_u32 {sT0}, {sT0}, {sT1}")
    a(f"s_lshl_b32 {sT1}, {sU}, 8")
    a(f"s_add_u32 {sT0}, {sT0}, {sT1}")
    a(f"s_add_u32 {sT0}, {sT0}, {WS_H4}")
    a("v_and_b32 v5, 3, v1")
    a("v_lshlrev_b32 v5, 6, v5")
    a("v_and_b32 v6, 60, v1")
    a(f"v_add3_u32 v5, v5, v6, {sT0}")
    a("s_waitcnt lgkmcnt(0)")
    st = 1
    while st < 16:
        for d in range(0, 16, 2 * st):
            a(f"v_pk_add_f32 v[{16+2*d}:{17+2*d}], v[{16+2*d}:{17+2*d}], v[{16+2*(d+st)}:{17+2*(d+st)}]")
        st *= 2
    a("v_add_f32 v16, v16, v17")
    a("v_min_u32 v16, -2, v16")
    a(f"global_store_dword v5, v16, {WS} sc1")
    stamp(9)
    a("s_branch L_end")

    a.label("L_post_mlp")
    a(f"s_cmp_eq_u32 {sWAVE}, 15")
    a("s_cbranch_scc1 L_end")
    a(f"s_cmp_eq_u32 {sWAVE}, 14")
    a("s_cbranch_scc1 L_mlp_fin")
    a(f"s_cmp_ge_u32 {sWAVE}, 9")
    a("s_cbranch_scc1 L_mlp_ln")
    a("v_and_b32 v4, 31, v1")
    a(f"s_lshl_b32 {sT0}, {sU}, 6")
    a(f"v_lshl_add_u32 v4, v4, 1, {sT0}")
    a(f"global_load_ushort v15, v4, {B1}")
    a(f"s_mul_i32 {sT1}, {sWAVE}, {64*9216}")
    a(f"s_add_u32 {sT0}, {sT0}, {sT1}")
    addbase(TB, W1, sT0)
    lane_off("v4", 64, 9216)
    a(f"s_lshl_b32 s56, {sWAVE}, 12")
    dma_block(TB, "s56", 4, 16, 9216, "v4")
    a(f"s_mul_i32 {sT0}, {sU}, {32*1152}")
    a(f"s_lshl_b32 {sT1}, {sWAVE}, 7")
    a(f"s_add_u32 {sT0}, {sT0}, {sT1}")
    addbase(TB2, W2, sT0)
    lane_off("v4", 128, 1152)
    a(f"s_add_u32 s57, s56, 36864")
    dma_block(TB2, "s57", 4, 8, 1152, "v4")
    tr_addr("v5", 64, "s56")
    tr_addr("v9", 128, "s57")
    act_addr("v6")
    part_addr("v8", 32, 2)
    a("v_and_b32 v7, 1, v1")
    a("v_lshlrev_b32 v7, 6, v7")
    a("v_lshl_add_u32 v7, v3, 4, v7")
    a(f"v_add_u32 v7, {L_HID}, v7")
    a("v_lshrrev_b32 v4, 1, v2")
    a(f"v_mov_b32 v14, {L_ZERO}")
    for t in range(4):
        a(f"v_cmp_eq_u32 vcc, {t}, v4")
        a(f"v_cndmask_b32 v{10+t}, v14, v7, vcc")
    a("v_and_b32 v7, 1, v1")
    a("v_mul_u32_u24 v14, 2304, v7")
    a("v_lshl_add_u32 v14, v4, 6, v14")
    a("v_lshl_add_u32 v14, v3, 4, v14")
    a(f"s_mul_i32 {sT0}, {sU}, 4608")
    a(f"s_lshl_b32 {sT1}, {sWAVE}, 8")
    a(f"s_add_u32 {sT0}, {sT0}, {sT1}")
    a(f"s_add_u32 {sT0}, {sT0}, {WS_H5}")
    a(f"v_add_u32 v14, {sT0}, v14")
    a("s_waitcnt vmcnt(4)")
    tr_reads("v5", 64, 2, 2, 24)
    a("s_waitcnt vmcnt(0)")
    stamp(1)
    tr_reads("v9", 128, 1, 4, 64)
    a("v_lshlrev_b32 v15, 16, v15")
    a("s_waitcnt lgkmcnt(0)")
    a("s_barrier")
    a("s_barrier")
    a("s_barrier")
    a("ds_read_b128 v[16:19], v6")
    a("ds_read_b128 v[20:23], v6 offset:64")
    a("s_waitcnt lgkmcnt(0)")
    gemv_mfma(2, 24, 16, 56, 2)
    part_write("v8", 2, 56, 2)
    a("s_waitcnt lgkmcnt(0)")
    a("s_barrier")
    a(f"s_cmp_lg_u32 {sWAVE}, 0")
    a("s_cbranch_scc1 L_mlp_p5")
    a("v_lshlrev_b32 v4, 2, v1")
    a(f"v_add_u32 v4, {L_PART}, v4")
    for w in range(4):
        a(f"ds_read2st64_b32 v[{24+2*w}:{25+2*w}], v4 offset0:{2*w} offset1:{2*w+1}")
    a("ds_read_b32 v32, v4 offset:2048")
    a("v_lshlrev_b32 v5, 1, v1")
    a(f"v_add_u32 v5, {L_HID}, v5")
    a("s_mov_b32 s56, 0x3d372713")
    a("s_mov_b32 s57, 0xc0135761")
    a("s_waitcnt lgkmcnt(0)")
    a("v_pk_add_f32 v[24:25], v[24:25], v[26:27]")
    a("v_pk_add_f32 v[28:29], v[28:29], v[30:31]")
    a("v_pk_add_f32 v[24:25], v[24:25], v[28:29]")
    a("v_add_f32 v24, v24, v32")
    a("v_add_f32 v24, v24, v25")
    a("v_cvt_pk_bf16_f32 v24, v24, v24")
    a("v_lshlrev_b32 v24, 16, v24")
    a("v_add_f32 v24, v24, v15")
    a("v_cvt_pk_bf16_f32 v24, v24, v24")
    a("v_lshlrev_b32 v24, 16, v24")
    a("v_mul_f32 v25, v24, v24")
    a("v_fma_f32 v25, v25, s56, 1.0")
    a("v_mul_f32 v25, v25, v24")
    a("v_mul_f32 v25, s57, v25")
    a("v_exp_f32 v25, v25")
    a("v_add_f32 v25, 1.0, v25")
    a("v_rcp_f32 v25, v25")
    a("v_mul_f32 v24, v24, v25")
    a("v_cvt_pk_bf16_f32 v24, v24, v24")
    a("ds_write_b16 v5, v24")
    a("s_waitcnt lgkmcnt(0)")
    a.label("L_mlp_p5")
    a("s_barrier")
    for t in range(4):
        a(f"ds_read_b128 v[{16+4*t}:{19+4*t}], v{10+t}")
    for t in range(4):
        a(f"s_waitcnt lgkmcnt({3-t})")
        a(f"v_mfma_f32_16x16x32_bf16 v[32:35], v[{64+4*t}:{67+4*t}], v[{16+4*t}:{19+4*t}], {'v[32:35]' if t else '0'}")
    for i in range(4):
        a(f"v_min_u32 v{32+i}, -2, v{32+i}")
    a("s_mov_b32 exec_lo, 0x00ff00ff")
    a("s_mov_b32 exec_hi, 0x00ff00ff")
    a(f"global_store_dwordx4 v14, v[32:35], {WS} sc1")
    a("s_mov_b64 exec, -1")
    stamp(9)
    a("s_branch L_end")

    a.label("L_mlp_ln")
    a(f"s_sub_u32 s56, {sWAVE}, 9")
    a("v_and_b32 v4, 31, v1")
    a("s_lshl_b32 s57, s56, 5")
    a("v_add_u32 v4, s57, v4")
    a("v_lshrrev_b32 v5, 5, v1")
    a("v_cmp_gt_u32 vcc, 144, v4")
    a(f"s_mov_b64 {SAVE}, vcc")
    a("v_lshlrev_b32 v13, 6, v5")
    a(f"v_add_u32 v13, {L_RED}, v13")
    a("s_lshl_b32 s57, s56, 3")
    a("v_add_u32 v12, s57, v13")
    a(f"v_lshlrev_b32 v15, 4, v5")
    for i in range(4):
        a(f"v_mov_b32 v{64+i}, 0")
    a("s_mov_b64 exec, vcc")
    a("v_mul_u32_u24 v6, 1152, v5")
    a("v_lshl_add_u32 v6, v4, 3, v6")
    a(f"global_load_dwordx2 v[60:61], v6, {X}")
    a("v_lshlrev_b32 v7, 1, v6")
    a(f"v_add_u32 v14, {L_X1}, v7")
    a(f"v_add_u32 v8, {WS_H4 + 4096}, v7")
    a("v_add_u32 v9, 9216, v8")
    a("v_add_u32 v10, 9216, v9")
    a("v_add_u32 v11, 9216, v10")
    a("v_lshlrev_b32 v7, 4, v4")
    a(f"v_add_u32 v7, {WS_MR + 2304}, v7")
    a(f"v_add_u32 v6, {L_ACT}, v6")
    a.label("L_poll_h4")
    for i in range(3):
        a(f"global_load_dwordx4 v[{48+4*i}:{51+4*i}], v7, {WS} offset:{2304*(i-1)} sc1")
    for i in range(8):
        a(f"global_load_dwordx4 v[{16+4*i}:{19+4*i}], v{8+i//2}, {WS} offset:{-4096 + 4608*(i % 2)} sc1")
    a("s_waitcnt vmcnt(0)")
    max_chain("v62", [f"v{i}" for i in range(16, 60)])
    a("v_cmp_eq_u32 vcc, -1, v62")
    poll_tail("L_poll_h4")
    a(f"s_mov_b64 exec, {SAVE}")
    stamp(8)
    for (d, s) in ((0, 1), (2, 3), (4, 5), (6, 7), (0, 2), (4, 6), (0, 4)):
        for h in range(2):
            a(f"v_pk_add_f32 v[{16+4*d+2*h}:{17+4*d+2*h}], v[{16+4*d+2*h}:{17+4*d+2*h}], v[{16+4*s+2*h}:{17+4*s+2*h}]")
    for i in range(12):
        a(f"v_lshrrev_b32 v{48+i}, v15, v{48+i}")
        a(f"v_lshlrev_b32 v{48+i}, 16, v{48+i}")
    bf16r2("v16", "v17", "v16", "v17", "v62")
    bf16r2("v18", "v19", "v18", "v19", "v63")
    for i in range(4):
        a(f"v_mul_f32 v{16+i}, v{16+i}, v{48+i}")
    bf16r2("v16", "v17", "v16", "v17", "v62")
    bf16r2("v18", "v19", "v18", "v19", "v63")
    a("v_lshlrev_b32 v20, 16, v60")
    a(f"v_and_b32 v21, {sHI16}, v60")
    a("v_lshlrev_b32 v22, 16, v61")
    a(f"v_and_b32 v23, {sHI16}, v61")
    for i in range(4):
        a(f"v_add_f32 v{16+i}, v{16+i}, v{20+i}")
    bf16r2("v64", "v65", "v16", "v17", "v62")
    bf16r2("v66", "v67", "v18", "v19", "v63")
    a("ds_write_b128 v14, v[64:67]")
    for i in range(4):
        a(f"v_add_f32 v{56+i}, 1.0, v{56+i}")
    bf16r2("v56", "v57", "v56", "v57", "v62")
    bf16r2("v58", "v59", "v58", "v59", "v63")
    a("s_mov_b64 exec, -1")
    a("s_mov_b32 s57, 0x3ae38e39")

    def ln_round(rnd):
        a("v_add_f32 v24, v64, v65")
        a("v_mul_f32 v25, v64, v64")
        a("v_add_f32 v24, v24, v66")
        a("v_fmac_f32 v25, v65, v65")
        a("v_add_f32 v24, v24, v67")
        a("v_fmac_f32 v25, v66, v66")
        a("v_fmac_f32 v25, v67, v67")
        for sh in (8, 4, 2, 1):
            for r in ("v24", "v25"):
                a(f"v_add_f32_dpp {r}, {r}, {r} row_ror:{sh} row_mask:0xf bank_mask:0xf")
        for r in ("v24", "v25"):
            a(f"v_add_f32_dpp {r}, {r}, {r} row_bcast:15 row_mask:0xa bank_mask:0xf")
        a("s_mov_b32 exec_lo, 0x80000000")
        a("s_mov_b32 exec_hi, 0x80000000")
        a(f"ds_write_b64 v12, v[24:25] offset:{128*rnd}")
        a("s_mov_b64 exec, -1")
        a("s_waitcnt lgkmcnt(0)")
        a("s_barrier")
        a(f"ds_read_b128 v[24:27], v13 offset:{128*rnd}")
        a(f"ds_read_b128 v[28:31], v13 offset:{128*rnd+16}")
        a(f"ds_read_b64 v[32:33], v13 offset:{128*rnd+32}")
        a("s_waitcnt lgkmcnt(0)")
        a("v_pk_add_f32 v[24:25], v[24:25], v[26:27]")
        a("v_pk_add_f32 v[28:29], v[28:29], v[30:31]")
        a("v_pk_add_f32 v[24:25], v[24:25], v[32:33]")
        a("v_pk_add_f32 v[24:25], v[24:25], v[28:29]")
        a("v_mul_f32 v24, s57, v24")
        a("v_mul_f32 v25, s57, v25")
        a("v_fma_f32 v25, -v24, v24, v25")
        a("v_max_f32 v25, 0, v25")
        bf16r2("v24", "v25", "v24", "v25", "v26")
        a("v_add_f32 v25, 0x3727c5ac, v25")
        for i in range(4):
            a(f"v_sub_f32 v{64+i}, v{64+i}, v24")
        a("v_cvt_pk_bf16_f32 v25, v25, v25")
        a("v_lshlrev_b32 v25, 16, v25")
        a("v_sqrt_f32 v25, v25")
        bf16r2("v64", "v65", "v64", "v65", "v62")
        a("v_cvt_pk_bf16_f32 v25, v25, v25")
        a("v_lshlrev_b32 v25, 16, v25")
        a("v_rcp_f32 v25, v25")
        bf16r2("v66", "v67", "v66", "v67", "v63")
        for i in range(4):
            a(f"v_mul_f32 v{64+i}, v{64+i}, v25")

    ln_round(0)
    a(f"s_mov_b64 exec, {SAVE}")
    bf16r2("v68", "v69", "v64", "v65", "v62")
    bf16r2("v70", "v71", "v66", "v67", "v63")
    a("s_mov_b64 exec, -1")
    for i in range(4):
        a(f"v_mov_b32 v{64+i}, 0")
    a(f"s_mov_b64 exec, {SAVE}")
    for i in range(4):
        a(f"v_mul_f32 v{68+i}, v{68+i}, v{56+i}")
    bf16r2("v68", "v69", "v68", "v69", "v62")
    bf16r2("v70", "v71", "v70", "v71", "v63")
    for i in range(4):
        a(f"v_add_f32 v{68+i}, v{68+i}, v{52+i}")
    bf16r2("v64", "v65", "v68", "v69", "v62")
    bf16r2("v66", "v67", "v70", "v71", "v63")
    a("s_mov_b64 exec, -1")
    ln_round(1)
    a("v_cvt_pk_bf16_f32 v64, v64, v65")
    a("v_cvt_pk_bf16_f32 v65, v66, v67")
    a(f"s_mov_b64 exec, {SAVE}")
    a("ds_write_b64 v6, v[64:65]")
    a("s_waitcnt lgkmcnt(0)")
    stamp(9)
    a("s_barrier")
    a("s_branch L_end")

    a.label("L_mlp_fin")
    a(f"s_cmp_ge_u32 {sU}, 72")
    a("s_cselect_b32 s56, 72, 0")
    a("s_cselect_b32 s58, 16, 0")
    a(f"s_sub_u32 s56, {sU}, s56")
    a("v_and_b32 v4, 1, v1")
    a("s_lshl_b32 s57, s56, 4")
    a("v_lshl_add_u32 v5, v4, 3, s57")
    a(f"global_load_dwordx2 v[40:41], v5, {B2}")
    a("v_lshlrev_b32 v5, 1, v5")
    a(f"v_add_u32 v5, {WS_MR + 1728*4}, v5")
    a(f"s_lshl_b32 s57, {sU}, 5")
    a("v_lshl_add_u32 v6, v4, 4, s57")
    a(f"v_add_u32 v7, {L_X1}, v6")
    a("v_lshrrev_b32 v13, 1, v6")
    a("v_lshrrev_b32 v8, 1, v1")
    a("v_mul_u32_u24 v8, 4608, v8")
    a(f"v_add_u32 v8, {WS_H5}, v8")
    a("v_add_u32 v8, v8, v6")
    for i in range(1, 5):
        a(f"v_add_u32 v{8+i}, {32*4608}, v{7+i}")
    a("v_cmp_gt_u32 vcc, 32, v1")
    a("v_cndmask_b32 v12, v11, v12, vcc")
    a(f"s_mov_b64 {SAVE}, vcc")
    get_tag()
    a("s_barrier")
    a("ds_read_b128 v[44:47], v7")
    a("s_barrier")
    a("s_barrier")
    a("s_barrier")
    a("s_barrier")
    a.label("L_poll_h5")
    a(f"global_load_dwordx4 v[36:39], v5, {WS} sc1")
    for i in range(5):
        a(f"global_load_dwordx4 v[{16+4*i}:{19+4*i}], v{8+i}, {WS} sc1")
    a("s_waitcnt vmcnt(0)")
    max_chain("v14", [f"v{i}" for i in range(16, 40)])
    a("v_cmp_eq_u32 vcc, -1, v14")
    poll_tail("L_poll_h5")
    a(f"s_mov_b64 exec, {SAVE}")
    stamp(8)
    a("v_pk_add_f32 v[16:17], v[16:17], v[32:33]")
    a("v_pk_add_f32 v[18:19], v[18:19], v[34:35]")
    a("s_mov_b64 exec, -1")
    for (d, s) in ((0, 1), (2, 3), (0, 2)):
        for h in range(2):
            a(f"v_pk_add_f32 v[{16+4*d+2*h}:{17+4*d+2*h}], v[{16+4*d+2*h}:{17+4*d+2*h}], v[{16+4*s+2*h}:{17+4*s+2*h}]")
    for sh in (8, 4, 2):
        for i in range(4):
            a(f"v_add_f32_dpp v{16+i}, v{16+i}, v{16+i} row_ror:{sh} row_mask:0xf bank_mask:0xf")
    for sw in ("16", "32"):
        for i in range(4):
            a(f"v_mov_b32 v{20+i}, v{16+i}")
        for i in range(4):
            a(f"v_permlane{sw}_swap_b32 v{16+i}, v{20+i}")
        for i in range(4):
            a(f"v_add_f32 v{16+i}, v{16+i}, v{20+i}")
    bf16r2("v16", "v17", "v16", "v17", "v14")
    bf16r2("v18", "v19", "v18", "v19", "v15")
    a("v_lshlrev_b32 v20, 16, v40")
    a(f"v_and_b32 v21, {sHI16}, v40")
    a("v_lshlrev_b32 v22, 16, v41")
    a(f"v_and_b32 v23, {sHI16}, v41")
    for i in range(4):
        a(f"v_add_f32 v{16+i}, v{16+i}, v{20+i}")
    bf16r2("v16", "v17", "v16", "v17", "v14")
    bf16r2("v18", "v19", "v18", "v19", "v15")
    for i in range(4):
        a(f"v_lshrrev_b32 v{36+i}, s58, v{36+i}")
        a(f"v_lshlrev_b32 v{36+i}, 16, v{36+i}")
    for i in range(4):
        a(f"v_mul_f32 v{16+i}, v{16+i}, v{36+i}")
    bf16r2("v16", "v17", "v16", "v17", "v14")
    bf16r2("v18", "v19", "v18", "v19", "v15")
    a("s_waitcnt lgkmcnt(0)")
    for i in range(4):
        a(f"v_add_f32 v{16+i}, v{16+i}, v{44+i}")
    a("v_cvt_pk_bf16_f32 v16, v16, v17")
    a("v_cvt_pk_bf16_f32 v17, v18, v19")
    a("s_mov_b64 exec, 3")
    a(f"global_store_dwordx2 v13, v[16:17], {OUT}")
    a(f"s_cmp_lg_u32 {sU}, 0")
    a("s_cbranch_scc1 L_fin2")
    a("s_mov_b64 exec, 1")
    a(f"v_mov_b32 v4, {WS_EPOCH}")
    a(f"v_mov_b32 v5, {sTAG}")
    a(f"global_store_dword v4, v5, {WS} sc1")
    a.label("L_fin2")
    stamp(9)

    a.label("L_end")
    if profile:
        a("s_mov_b64 exec, 1")
        a("s_lshl_b32 s56, s2, 4")
        a(f"s_add_u32 s56, s56, {sWAVE}")
        a("s_lshl_b32 s56, s56, 6")
        a(f"s_add_u32 s56, s56, {WS_STAMP}")
        a("v_mov_b32 v4, s56")
        for k in range(10):
            a(f"v_mov_b32 v5, s{80+2*k}")
            a(f"global_store_dword v4, v5, {WS} offset:{4*k}")
        a("s_getreg_b32 s57, hwreg(HW_REG_XCC_ID)")
        a("v_mov_b32 v5, s57")
        a(f"global_store_dword v4, v5, {WS} offset:40")
    a.label("L_exit")

    hdr = open("cdna_kernels/" + NAME + ".s.ref").read().split("; @launch")[0]
    pre = ""
    if profile:
        pre = "".join(f"    s_mov_b32 s{80+2*k}, 0\n" for k in range(10))
    text = hdr + f"""; @launch grid=(256,1,1) block=(1024,1,1) lds={LDS_BYTES}
.amdgcn_target "amdgcn-amd-amdhsa--gfx950"
.text
.globl {NAME}_kernel
.p2align 8
.type {NAME}_kernel,@function
{NAME}_kernel:
""" + pre + a.text() + f"""    s_endpgm
.section .rodata,"a"
.p2align 6
.amdhsa_kernel {NAME}_kernel
  .amdhsa_next_free_vgpr 128
  .amdhsa_next_free_sgpr 102
  .amdhsa_accum_offset 128
  .amdhsa_group_segment_fixed_size 0
  .amdhsa_kernarg_size 120
  .amdhsa_user_sgpr_count 2
  .amdhsa_user_sgpr_kernarg_segment_ptr 1
  .amdhsa_system_sgpr_workgroup_id_x 1
.end_amdhsa_kernel
"""
    return text


if __name__ == "__main__":
    prof = "--profile" in sys.argv
    out = [x for x in sys.argv[1:] if not x.startswith("--")]
    path = out[0] if out else "cdna_kernels/" + NAME + ".s"
    open(path, "w").write(gen(profile=prof))
    print("wrote", path)
```

```python
import sys
from asmlib import Asm

NAME = "adaLN_cond__sliding_block_cached__mixer_channel_mlp__decode"

WS_EPOCH = 0
WS_H1 = 0x1000
WS_H2 = 0x4000
WS_MR = 0x10000
WS_H3 = 0x20000
WS_H4 = WS_H3 + 256 * 640
WS_RESET_BYTES = 216 * 1024
WS_H5 = 0x80000
WS_STAMP = 0x200000
assert WS_H4 + 8 * 4608 <= WS_H3 + WS_RESET_BYTES <= WS_H5

L_W = 0
L_W2 = 73728
L_X1 = L_W2
L_MISC = L_W2 + 65536
L_OP = L_MISC
L_LS = L_OP + 12288
L_RED = L_LS + 128
L_ZERO = L_RED + 256
L_ZEND = L_OP + 13312
L_ACT = L_ZEND
L_PART = L_ACT + 2304
L_Q = L_PART + 4608
L_MX = L_Q + 512
L_HID = L_MX + 16
L_END = L_HID + 128
LDS_BYTES = (L_END + 255) // 256 * 256
assert LDS_BYTES <= 163840

R_MLP, R_Q, R_WO9, R_MOD = 0, 1, 2, 3

X, KC, VC, WQ, WO, W1, B1, W2, B2, C, WM, OUT, DBG, WS = (
    "s[16:17]", "s[18:19]", "s[20:21]", "s[22:23]", "s[24:25]", "s[28:29]", "s[30:31]", "s[32:33]",
    "s[34:35]", "s[36:37]", "s[38:39]", "s[40:41]", "s[42:43]", "s[44:45]")


def lo(p):
    return "s" + p[2:].split(":")[0]


def hi(p):
    return "s" + p.split(":")[1][:-1]


sWAVE, sX, sJ, sROLE, sIDX, sGS, sGC, sTAG = "s3", "s4", "s5", "s6", "s7", "s8", "s9", "s10"
sAW = "s11"
sU = "s12"
sTO = "s13"
sT0, sT1 = "s14", "s15"
TB = "s[46:47]"
TB2 = "s[48:49]"
SAVE = "s[50:51]"
sPLO, sPHI = "s52", "s53"
sHI16 = "s54"
sEP = "s55"
LOG2E = 0x3fb8aa3b
TIMEOUT = 1 << 19


def default_table():
    t1 = lambda q0, m0, X_: [(R_MLP, m0 + i) for i in range(5)] + [(R_Q, q0), (R_Q, q0 + 1), X_]
    t2 = lambda q0, m0, Xa, Xb: [(R_MLP, m0 + i) for i in range(4)] + [(R_Q, q0), (R_Q, q0 + 1), Xa, Xb]
    roles = (t1(0, 0, (R_MOD, 0)) + t1(2, 5, (R_MOD, 1)) +
             t2(4, 10, (R_MOD, 2), (R_WO9, 8)) + t2(6, 14, (R_MOD, 3), (R_MOD, 4)))
    counts = ([11, 11, 11, 11, 11, 3, 3, 3] * 2 +
              [12, 12, 12, 12, 3, 3, 3, 7] +
              [12, 12, 12, 12, 5, 5, 3, 3])
    return roles, counts


def gen(profile=False, table=None, dbg=False):
    a = Asm()
    roles, counts = table or default_table()
    ent = []
    for p in range(4):
        gs = 0
        for part in range(8):
            j = 8 * p + part
            role, idx = roles[j]
            cnt = counts[j]
            assert 1 <= cnt <= 12
            if role == R_MOD:
                assert cnt <= 3
            ent.append(gs | (cnt << 6) | (role << 10) | ((idx & 15) << 12))
            gs += cnt
        assert gs == 64, (p, gs)
    nstamp = [0]

    def stamp(k):
        if profile:
            a(f"s_memrealtime s[{80+2*k}:{81+2*k}]")
            a("s_waitcnt lgkmcnt(0)")

    def addbase(dst, src, off_s):
        a(f"s_add_u32 {lo(dst)}, {lo(src)}, {off_s}")
        a(f"s_addc_u32 {hi(dst)}, {hi(src)}, 0")

    def bf16r2(d0, d1, s0, s1, tmp):
        a(f"v_cvt_pk_bf16_f32 {tmp}, {s0}, {s1}")
        a(f"v_lshlrev_b32 {d0}, 16, {tmp}")
        a(f"v_and_b32 {d1}, {sHI16}, {tmp}")

    def half_reduce(regs, tmp):
        for sh in (8, 4, 2, 1):
            for r in regs:
                a(f"v_add_f32_dpp {r}, {r}, {r} row_ror:{sh} row_mask:0xf bank_mask:0xf")
        for r, t in zip(regs, tmp):
            a(f"v_mov_b32 {t}, {r}")
        for r, t in zip(regs, tmp):
            a(f"v_permlane16_swap_b32 {r}, {t}")
        for r, t in zip(regs, tmp):
            a(f"v_add_f32 {r}, {r}, {t}")

    def dma_block(base, ldsbase_s, n, rows_per, stride, voff):
        for i in range(n):
            if i % 4 == 0:
                if i == 0:
                    a(f"s_mov_b32 m0, {ldsbase_s}")
                else:
                    a(f"s_add_u32 m0, {ldsbase_s}, {i*1024}")
                    a(f"v_add_u32 {voff}, {rows_per*stride + 3*1024}, {voff}")
            else:
                a(f"v_add_u32 {voff}, {rows_per*stride - 1024}, {voff}")
            a(f"global_load_lds_dwordx4 {voff}, {base} offset:{(i % 4)*1024} nt")

    def lane_off(v, rb, stride):
        lpr = rb // 16
        a(f"v_lshrrev_b32 {v}, {lpr.bit_length()-1}, v1")
        a(f"v_mul_u32_u24 {v}, {stride}, {v}")
        a(f"v_and_b32 v7, {lpr-1}, v1")
        a(f"v_lshl_add_u32 {v}, v7, 4, {v}")

    def tr_addr(v, rb, base_s):
        a(f"v_bfe_u32 v7, v1, 2, 2")
        a(f"v_lshl_add_u32 {v}, v3, 3, v7")
        a(f"v_lshlrev_b32 {v}, {rb.bit_length()-1}, {v}")
        a(f"v_and_b32 v7, 3, v1")
        a(f"v_lshl_add_u32 {v}, v7, 3, {v}")
        a(f"v_add_u32 {v}, {base_s}, {v}")

    def tr_reads(vaddr, rb, ksteps, ntiles, b0):
        for s in range(ksteps):
            for t in range(ntiles):
                r = b0 + 4 * (s * ntiles + t)
                for hf in range(2):
                    a(f"ds_read_b64_tr_b16 v[{r+2*hf}:{r+2*hf+1}], {vaddr} offset:{(32*s+4*hf)*rb + 32*t}")

    def act_addr(v):
        a(f"v_and_b32 v7, 1, v1")
        a(f"v_mul_u32_u24 {v}, 1152, v7")
        a(f"v_lshl_add_u32 {v}, v3, 4, {v}")
        a(f"s_lshl_b32 {sT0}, {sWAVE}, 7")
        a(f"s_add_u32 {sT0}, {sT0}, {L_ACT}")
        a(f"v_add_u32 {v}, {sT0}, {v}")

    def gemv_mfma(ntiles, b0, a0, acc0, form):
        for s in range(2):
            for t in range(ntiles):
                w = f"v[{b0+4*(s*ntiles+t)}:{b0+4*(s*ntiles+t)+3}]"
                ac = f"v[{a0+4*s}:{a0+4*s+3}]"
                d = f"v[{acc0+4*t}:{acc0+4*t+3}]"
                cc = d if s else "0"
                if form == 1:
                    a(f"v_mfma_f32_16x16x32_bf16 {d}, {ac}, {w}, {cc}")
                else:
                    a(f"v_mfma_f32_16x16x32_bf16 {d}, {w}, {ac}, {cc}")

    def part_addr(v, ncols, form):
        a(f"s_mul_i32 {sT0}, {sWAVE}, {ncols*8}")
        a(f"s_add_u32 {sT0}, {sT0}, {L_PART}")
        if form == 1:
            a(f"v_lshlrev_b32 {v}, 3, v2")
        else:
            a(f"v_mul_u32_u24 {v}, {ncols*4}, v2")
            a(f"v_lshl_add_u32 {v}, v3, 4, {v}")
        a(f"v_add_u32 {v}, {sT0}, {v}")

    def part_write(v, ntiles, acc0, form):
        if form == 1:
            a("s_mov_b64 exec, 0xffff")
            for t in range(ntiles):
                a(f"ds_write_b64 {v}, v[{acc0+4*t}:{acc0+4*t+1}] offset:{128*t}")
        else:
            a("s_mov_b32 exec_lo, 0x00030003")
            a("s_mov_b32 exec_hi, 0x00030003")
            for t in range(ntiles):
                a(f"ds_write_b128 {v}, v[{acc0+4*t}:{acc0+4*t+3}] offset:{64*t}")
        a("s_mov_b64 exec, -1")

    def reduce9_b64(ncols, r0):
        a(f"v_lshlrev_b32 v4, 3, v1")
        a(f"v_add_u32 v4, {L_PART}, v4")
        for w in range(9):
            a(f"ds_read_b64 v[{r0+2*w}:{r0+2*w+1}], v4 offset:{w*ncols*8}")
        a("s_waitcnt lgkmcnt(0)")
        for (d, s) in ((0, 1), (2, 3), (4, 5), (6, 7), (0, 2), (4, 6), (0, 8), (0, 4)):
            a(f"v_pk_add_f32 v[{r0+2*d}:{r0+2*d+1}], v[{r0+2*d}:{r0+2*d+1}], v[{r0+2*s}:{r0+2*s+1}]")

    def poll_tail(lbl):
        a(f"s_cbranch_vccz {lbl}_ok")
        a("s_mov_b64 exec, vcc")
        a(f"s_sub_u32 {sTO}, {sTO}, 1")
        a(f"s_cbranch_scc0 {lbl}")
        a("s_branch L_end")
        a.label(f"{lbl}_ok")

    def max_chain(dst, regs):
        a(f"v_max3_u32 {dst}, {regs[0]}, {regs[1]}, {regs[2]}")
        rest = regs[3:]
        while len(rest) >= 2:
            a(f"v_max3_u32 {dst}, {dst}, {rest[0]}, {rest[1]}")
            rest = rest[2:]
        if rest:
            a(f"v_max_u32 {dst}, {dst}, {rest[0]}")

    def get_tag():
        a("s_waitcnt lgkmcnt(0)")
        a(f"s_mul_i32 {sTAG}, {sEP}, 1664525")
        a(f"s_add_u32 {sTAG}, {sTAG}, 1013904223")

    a("s_cmp_ge_u32 s2, 256")
    a("s_cbranch_scc1 L_exit")
    stamp(0)
    a("s_load_dwordx16 s[16:31], s[0:1], 0")
    a("s_load_dwordx8 s[32:39], s[0:1], 64")
    a("s_load_dwordx4 s[40:43], s[0:1], 96")
    a("s_load_dwordx2 s[44:45], s[0:1], 112")
    a("v_lshrrev_b32 v4, 6, v0")
    a("v_and_b32 v1, 63, v0")
    a(f"v_readfirstlane_b32 {sWAVE}, v4")
    a("v_and_b32 v2, 15, v0")
    a("v_bfe_u32 v3, v0, 4, 2")
    for i in range(16):
        a(f"s_mov_b32 s{64+i}, 0x{(ent[2*i] | (ent[2*i+1] << 16)):08x}")
    a(f"s_and_b32 {sX}, s2, 7")
    a(f"s_lshr_b32 {sJ}, s2, 3")
    a(f"s_lshr_b32 m0, s2, 4")
    a(f"s_and_b32 {sT1}, {sJ}, 1")
    a(f"s_movrels_b32 {sT0}, s64")
    a(f"s_lshl_b32 {sT1}, {sT1}, 4")
    a(f"s_lshr_b32 {sT0}, {sT0}, {sT1}")
    a(f"s_and_b32 {sGS}, {sT0}, 63")
    a(f"s_bfe_u32 {sGC}, {sT0}, 0x40006")
    a(f"s_bfe_u32 {sROLE}, {sT0}, 0x2000a")
    a(f"s_bfe_u32 {sIDX}, {sT0}, 0x4000c")
    a(f"s_sub_u32 {sAW}, 11, {sWAVE}")
    a(f"s_mov_b32 {sPLO}, 0x05040100")
    a(f"s_mov_b32 {sPHI}, 0x07060302")
    a(f"s_mov_b32 {sHI16}, 0xffff0000")
    a(f"s_mov_b32 {sTO}, {TIMEOUT}")
    a("v_mov_b32 v8, 0")
    a("v_mov_b32 v9, 0")
    a("v_mov_b32 v10, 0")
    a("v_mov_b32 v11, 0")
    a("v_lshlrev_b32 v4, 4, v0")
    a(f"v_add_u32 v4, {L_OP}, v4")
    a(f"s_cmp_ge_u32 {sWAVE}, 13")
    a("s_cbranch_scc1 L_init2")
    a("ds_write_b128 v4, v[8:11]")
    a("s_branch L_init3")
    a.label("L_init2")
    a("v_mov_b32 v8, 0xff7fffff")
    a("v_mov_b32 v9, 0xff7fffff")
    a(f"v_mov_b32 v4, {L_MX}")
    a("ds_write_b64 v4, v[8:9]")
    a.label("L_init3")
    a("s_waitcnt lgkmcnt(0)")
    a(f"s_load_dword {sEP}, {WS}, {WS_EPOCH}")
    a(f"s_cmp_eq_u32 {sROLE}, {R_MLP}")
    a("s_cbranch_scc1 L_front_mlp")
    a(f"s_cmp_eq_u32 {sROLE}, {R_Q}")
    a("s_cbranch_scc1 L_front_q")
    a(f"s_cmp_eq_u32 {sROLE}, {R_WO9}")
    a("s_cbranch_scc1 L_front_wo")

    a.c("MOD: unit u = (k>>1)*16 + 2x + (k&1) for k<4 ; 32+x for k==4 (x<4)")
    a(f"s_lshr_b32 {sT0}, {sIDX}, 1")
    a(f"s_lshl_b32 {sT0}, {sT0}, 4")
    a(f"s_and_b32 {sT1}, {sIDX}, 1")
    a(f"s_add_u32 {sU}, {sT0}, {sT1}")
    a(f"s_add_u32 {sU}, {sU}, {sX}")
    a(f"s_cmp_eq_u32 {sIDX}, 4")
    a(f"s_cselect_b32 {sT0}, 0, {sX}")
    a(f"s_add_u32 {sU}, {sU}, {sT0}")
    a(f"s_cmp_ge_u32 {sU}, 36")
    a("s_cbranch_scc1 L_attn_issue")
    a(f"s_cmp_ge_u32 {sWAVE}, 14")
    a("s_cbranch_scc1 L_mod_reset")
    a(f"s_cmp_ge_u32 {sWAVE}, 9")
    a("s_cbranch_scc1 L_mod_silu")
    a(f"s_mul_i32 {sT0}, {sWAVE}, {64*6912}")
    a(f"s_lshl_b32 {sT1}, {sU}, 6")
    a(f"s_add_u32 {sT0}, {sT0}, {sT1}")
    addbase(TB, WM, sT0)
    lane_off("v4", 64, 6912)
    a(f"s_lshl_b32 {sT1}, {sWAVE}, 12")
    a(f"s_add_u32 {sT1}, {sT1}, {L_W2}")
    dma_block(TB, sT1, 4, 16, 6912, "v4")
    tr_addr("v5", 64, sT1)
    act_addr("v6")
    part_addr("v8", 32, 1)
    a("s_barrier")
    a("ds_read_b128 v[16:19], v6")
    a("ds_read_b128 v[20:23], v6 offset:64")
    a("s_waitcnt vmcnt(0)")
    stamp(1)
    tr_reads("v5", 64, 2, 2, 24)
    a("s_waitcnt lgkmcnt(0)")
    gemv_mfma(2, 24, 16, 56, 1)
    part_write("v8", 2, 56, 1)
    a("s_waitcnt lgkmcnt(0)")
    a("s_barrier")
    a(f"s_cmp_lg_u32 {sWAVE}, 0")
    a("s_cbranch_scc1 L_mod_pub_done")
    reduce9_b64(32, 24)
    get_tag()
    a("v_cvt_pk_bf16_f32 v24, v24, v25")
    a(f"v_mov_b32 v25, {sTAG}")
    a(f"s_lshl_b32 {sT0}, {sU}, 8")
    a(f"s_add_u32 {sT0}, {sT0}, {WS_H1}")
    a(f"v_lshl_add_u32 v4, v1, 3, {sT0}")
    a("s_mov_b32 exec_hi, 0")
    a(f"global_store_dwordx2 v4, v[24:25], {WS} sc1")
    a("s_mov_b64 exec, -1")
    stamp(2)
    a.label("L_mod_pub_done")
    a("s_barrier")
    a(f"s_mul_i32 {sT0}, {sWAVE}, {64*6912}")
    a(f"s_lshl_b32 {sT1}, {sU}, 7")
    a(f"s_add_u32 {sT0}, {sT0}, {sT1}")
    a(f"s_add_u32 {sT0}, {sT0}, 2304")
    addbase(TB, WM, sT0)
    lane_off("v4", 128, 6912)
    a(f"s_lshl_b32 {sT1}, {sWAVE}, 13")
    dma_block(TB, sT1, 8, 8, 6912, "v4")
    tr_addr("v5", 128, sT1)
    part_addr("v8", 64, 1)
    a("s_waitcnt vmcnt(0)")
    tr_reads("v5", 128, 2, 4, 24)
    a("s_waitcnt lgkmcnt(0)")
    gemv_mfma(4, 24, 16, 56, 1)
    part_write("v8", 4, 56, 1)
    a("s_waitcnt lgkmcnt(0)")
    a("s_barrier")
    a(f"s_cmp_lg_u32 {sWAVE}, 0")
    a("s_cbranch_scc1 L_attn_wait")
    reduce9_b64(64, 24)
    a("v_cvt_pk_bf16_f32 v24, v24, v25")
    a("v_min_u32 v24, -2, v24")
    a(f"s_lshl_b32 {sT0}, {sU}, 8")
    a(f"s_add_u32 {sT0}, {sT0}, {WS_MR}")
    a(f"v_lshl_add_u32 v4, v1, 2, {sT0}")
    a(f"global_store_dword v4, v24, {WS} sc1")
    stamp(3)
    a("s_branch L_attn_wait")

    a.label("L_mod_silu")
    a("v_subrev_u32 v4, 576, v0")
    a("v_cmp_gt_u32 vcc, 288, v4")
    a("s_mov_b64 exec, vcc")
    a("v_lshlrev_b32 v4, 3, v4")
    a(f"global_load_dwordx2 v[8:9], v4, {C}")
    a(f"s_mov_b32 {sT0}, 0x{LOG2E ^ 0x80000000:08x}")
    a("s_waitcnt vmcnt(0)")
    a("v_lshlrev_b32 v10, 16, v8")
    a(f"v_and_b32 v11, {sHI16}, v8")
    a("v_lshlrev_b32 v12, 16, v9")
    a(f"v_and_b32 v13, {sHI16}, v9")
    for i in range(4):
        a(f"v_mul_f32 v{16+i}, {sT0}, v{10+i}")
    for i in range(4):
        a(f"v_exp_f32 v{16+i}, v{16+i}")
    for i in range(4):
        a(f"v_add_f32 v{16+i}, 1.0, v{16+i}")
    for i in range(4):
        a(f"v_rcp_f32 v{16+i}, v{16+i}")
    for i in range(4):
        a(f"v_mul_f32 v{16+i}, v{16+i}, v{10+i}")
    a("v_cvt_pk_bf16_f32 v8, v16, v17")
    a("v_cvt_pk_bf16_f32 v9, v18, v19")
    a(f"v_add_u32 v4, {L_ACT}, v4")
    a("ds_write_b64 v4, v[8:9]")
    a("s_mov_b64 exec, -1")
    a("s_waitcnt lgkmcnt(0)")
    a("s_branch L_mod_bars")

    a.label("L_mod_reset")
    a("v_mov_b32 v8, -1")
    a("v_mov_b32 v9, -1")
    a("v_mov_b32 v10, -1")
    a("v_mov_b32 v11, -1")
    a(f"s_lshl_b32 {sT0}, {sU}, 1")
    a(f"s_add_u32 {sT0}, {sT0}, {sWAVE}")
    a(f"s_sub_u32 {sT0}, {sT0}, 14")
    a(f"s_mul_i32 {sT0}, {sT0}, 3072")
    a(f"s_add_u32 {sT0}, {sT0}, {WS_H3}")
    a(f"v_lshl_add_u32 v4, v1, 4, {sT0}")
    for i in range(3):
        a(f"global_store_dwordx4 v4, v[8:11], {WS} offset:{1024*i} sc1")
    a(f"s_lshl_b32 {sT0}, {sU}, 8")
    a(f"s_add_u32 {sT0}, {sT0}, {WS_MR}")
    a(f"v_lshl_add_u32 v4, v1, 2, {sT0}")
    a(f"global_store_dword v4, v8, {WS} sc1")
    a("s_barrier")
    a("s_waitcnt vmcnt(0)")
    a("s_branch L_mod_bars2")
    a.label("L_mod_bars")
    a("s_barrier")
    a.label("L_mod_bars2")
    a("s_barrier")
    a("s_barrier")
    a(f"s_mov_b32 {sU}, 100")
    a("s_branch L_attn_issue_mod")

    a.label("L_front_q")
    a(f"s_mov_b32 {sU}, {sIDX}")
    a(f"s_cmp_ge_u32 {sWAVE}, 14")
    a("s_cbranch_scc1 L_q_bars")
    a(f"s_cmp_ge_u32 {sWAVE}, 9")
    a("s_cbranch_scc1 L_q_h")
    a(f"s_lshl_b32 {sT0}, {sWAVE}, 19")
    a(f"s_lshl_b32 {sT1}, {sX}, 10")
    a(f"s_add_u32 {sT0}, {sT0}, {sT1}")
    a(f"s_lshl_b32 {sT1}, {sIDX}, 7")
    a(f"s_add_u32 {sT0}, {sT0}, {sT1}")
    addbase(TB, WQ, sT0)
    lane_off("v4", 128, 8192)
    a(f"s_lshl_b32 {sT1}, {sWAVE}, 13")
    dma_block(TB, sT1, 8, 8, 8192, "v4")
    tr_addr("v5", 128, sT1)
    act_addr("v6")
    part_addr("v8", 64, 2)
    a("s_waitcnt vmcnt(0)")
    stamp(1)
    tr_reads("v5", 128, 2, 4, 24)
    a("s_waitcnt lgkmcnt(0)")
    a("s_barrier")
    a("ds_read_b128 v[16:19], v6")
    a("ds_read_b128 v[20:23], v6 offset:64")
    a("s_waitcnt lgkmcnt(0)")
    gemv_mfma(4, 24, 16, 56, 2)
    part_write("v8", 4, 56, 2)
    a("s_waitcnt lgkmcnt(0)")
    a("s_barrier")
    a(f"s_cmp_lg_u32 {sWAVE}, 0")
    a("s_cbranch_scc1 L_q_b3")
    reduce9_b64(64, 24)
    get_tag()
    a("v_cvt_pk_bf16_f32 v24, v24, v25")
    a(f"v_mov_b32 v25, {sTAG}")
    a(f"s_lshl_b32 {sT0}, {sX}, 12")
    a(f"s_lshr_b32 {sT1}, {sIDX}, 2")
    a(f"s_lshl_b32 {sT1}, {sT1}, 11")
    a(f"s_add_u32 {sT0}, {sT0}, {sT1}")
    a(f"s_and_b32 {sT1}, {sIDX}, 3")
    a(f"s_lshl_b32 {sT1}, {sT1}, 8")
    a(f"s_add_u32 {sT0}, {sT0}, {sT1}")
    a(f"s_add_u32 {sT0}, {sT0}, {WS_H2}")
    a("v_lshrrev_b32 v4, 5, v1")
    a("v_lshlrev_b32 v4, 10, v4")
    a("v_and_b32 v5, 31, v1")
    a("v_lshl_add_u32 v4, v5, 3, v4")
    a(f"v_add_u32 v4, {sT0}, v4")
    a(f"global_store_dwordx2 v4, v[24:25], {WS} sc1")
    stamp(3)
    a("s_branch L_q_b3")

    a.label("L_q_h")
    a("v_lshrrev_b32 v4, 5, v1")
    a("v_mul_u32_u24 v4, 1152, v4")
    a("v_and_b32 v5, 31, v1")
    a("v_mul_u32_u24 v5, 36, v5")
    a("v_add_u32 v4, v4, v5")
    for i in range(3):
        a(f"global_load_dwordx3 v[{16+4*i}:{18+4*i}], v4, {X} offset:{12*i}")
    a("v_subrev_u32 v6, 576, v0")
    a("v_min_u32 v5, 287, v6")
    a("v_lshlrev_b32 v5, 2, v5")
    a(f"global_load_dword v12, v5, {X}")
    a(f"global_load_dword v13, v5, {X} offset:1152")
    a("s_waitcnt vmcnt(2)")
    src = [16, 17, 18, 20, 21, 22, 24, 25, 26]
    for i, r in enumerate(src):
        a(f"v_lshlrev_b32 v{32+2*i}, 16, v{r}")
        a(f"v_and_b32 v{33+2*i}, {sHI16}, v{r}")
    a("v_add_f32 v8, v32, v33")
    for i in range(2, 18):
        a(f"v_add_f32 v8, v8, v{32+i}")
    half_reduce(["v8"], ["v9"])
    a(f"s_mov_b32 {sT0}, 0x3ae38e39")
    a(f"v_mul_f32 v8, {sT0}, v8")
    a("v_mov_b32 v10, 0")
    for i in range(18):
        a(f"v_sub_f32 v9, v{32+i}, v8")
        a("v_fmac_f32 v10, v9, v9")
    half_reduce(["v10"], ["v9"])
    a(f"v_mul_f32 v10, {sT0}, v10")
    bf16r2("v8", "v10", "v8", "v10", "v9")
    a("v_add_f32 v10, 0x3727c5ac, v10")
    bf16r2("v10", "v11", "v10", "v10", "v9")
    a("v_sqrt_f32 v10, v10")
    bf16r2("v10", "v11", "v10", "v10", "v9")
    a("v_rcp_f32 v10, v10")
    a("v_readlane_b32 s56, v8, 0")
    a("v_readlane_b32 s57, v8, 32")
    a("v_readlane_b32 s58, v10, 0")
    a("v_readlane_b32 s59, v10, 32")
    a("s_waitcnt vmcnt(0)")
    a("v_lshlrev_b32 v16, 16, v12")
    a(f"v_and_b32 v17, {sHI16}, v12")
    a("v_lshlrev_b32 v18, 16, v13")
    a(f"v_and_b32 v19, {sHI16}, v13")
    a("v_subrev_f32 v16, s56, v16")
    a("v_subrev_f32 v17, s56, v17")
    a("v_subrev_f32 v18, s57, v18")
    a("v_subrev_f32 v19, s57, v19")
    bf16r2("v16", "v17", "v16", "v17", "v9")
    bf16r2("v18", "v19", "v18", "v19", "v9")
    a("v_mul_f32 v16, s58, v16")
    a("v_mul_f32 v17, s58, v17")
    a("v_mul_f32 v18, s59, v18")
    a("v_mul_f32 v19, s59, v19")
    bf16r2("v16", "v17", "v16", "v17", "v9")
    bf16r2("v18", "v19", "v18", "v19", "v9")
    get_tag()
    a("v_cmp_gt_u32 vcc, 288, v6")
    a("s_mov_b64 exec, vcc")
    a(f"s_mov_b64 {SAVE}, vcc")
    a("v_lshlrev_b32 v4, 4, v6")
    a(f"v_add_u32 v4, {WS_H1}, v4")
    a(f"v_add_u32 v5, 4608, v4")
    a("v_lshlrev_b32 v6, 2, v6")
    a(f"v_add_u32 v6, {L_ACT}, v6")
    a.label("L_poll_h1")
    a(f"global_load_dwordx4 v[20:23], v4, {WS} sc1")
    a(f"global_load_dwordx4 v[24:27], v5, {WS} sc1")
    a("s_waitcnt vmcnt(0)")
    a(f"v_xor_b32 v8, {sTAG}, v21")
    a(f"v_xor_b32 v9, {sTAG}, v23")
    a(f"v_xor_b32 v10, {sTAG}, v25")
    a(f"v_xor_b32 v11, {sTAG}, v27")
    a("v_or3_b32 v8, v8, v9, v10")
    a("v_or_b32 v8, v8, v11")
    a("v_cmp_ne_u32 vcc, 0, v8")
    poll_tail("L_poll_h1")
    a(f"s_mov_b64 exec, {SAVE}")
    stamp(2)
    a("v_lshlrev_b32 v8, 16, v24")
    a("v_lshlrev_b32 v9, 16, v26")
    a(f"v_and_b32 v10, {sHI16}, v24")
    a(f"v_and_b32 v11, {sHI16}, v26")
    for i in range(4):
        a(f"v_add_f32 v{8+i}, 1.0, v{8+i}")
    bf16r2("v8", "v9", "v8", "v9", "v12")
    bf16r2("v10", "v11", "v10", "v11", "v13")
    for i in range(4):
        a(f"v_mul_f32 v{8+i}, v{8+i}, v{16+i}")
    bf16r2("v8", "v9", "v8", "v9", "v12")
    bf16r2("v10", "v11", "v10", "v11", "v13")
    a("v_lshlrev_b32 v16, 16, v20")
    a("v_lshlrev_b32 v17, 16, v22")
    a(f"v_and_b32 v18, {sHI16}, v20")
    a(f"v_and_b32 v19, {sHI16}, v22")
    for i in range(4):
        a(f"v_add_f32 v{8+i}, v{8+i}, v{16+i}")
    a("v_cvt_pk_bf16_f32 v8, v8, v9")
    a("v_cvt_pk_bf16_f32 v10, v10, v11")
    a("ds_write_b32 v6, v8")
    a("ds_write_b32 v6, v10 offset:1152")
    a("s_mov_b64 exec, -1")
    a("s_waitcnt lgkmcnt(0)")
    a.label("L_q_bars")
    a("s_barrier")
    a("s_barrier")
    a.label("L_q_b3")
    a("s_barrier")

    a.label("L_front_wo")
    a(f"s_mov_b32 {sU}, {sIDX}")
    a(f"s_lshl_b32 {sT0}, {sX}, 4")
    a(f"s_add_u32 {sT0}, {sT0}, {sWAVE}")
    a(f"s_mul_i32 {sT0}, {sT0}, {32*1152}")
    a(f"s_lshl_b32 {sT1}, {sU}, 7")
    a(f"s_add_u32 {sT0}, {sT0}, {sT1}")
    addbase(TB, WO, sT0)
    lane_off("v4", 128, 1152)
    a(f"s_lshl_b32 {sT1}, {sWAVE}, 12")
    a(f"s_add_u32 {sT1}, {sT1}, {L_W2}")
    dma_block(TB, sT1, 4, 8, 1152, "v4")
    a("s_branch L_attn_issue")

    a.label("L_front_mlp")
    a(f"s_cmp_ge_u32 {sJ}, 26")
    a(f"s_cselect_b32 {sT0}, 16, 0")
    a(f"s_add_u32 {sIDX}, {sIDX}, {sT0}")
    a(f"s_mul_i32 {sU}, {sX}, 18")
    a(f"s_add_u32 {sU}, {sU}, {sIDX}")
    a(f"s_cmp_lg_u32 {sWAVE}, 14")
    a("s_cbranch_scc1 L_attn_issue")
    a("v_mov_b32 v8, -1")
    a("v_mov_b32 v9, -1")
    a("v_mov_b32 v10, -1")
    a("v_mov_b32 v11, -1")
    a(f"s_mul_i32 {sT0}, {sU}, 4608")
    a(f"s_add_u32 {sT0}, {sT0}, {WS_H5 + 1024}")
    a(f"v_lshl_add_u32 v4, v1, 4, {sT0}")
    for i in range(4):
        a(f"global_store_dwordx4 v4, v[8:11], {WS} offset:{1024*(i-1)} sc1")
    a("s_mov_b32 exec_hi, 0")
    a(f"global_store_dwordx4 v4, v[8:11], {WS} offset:3072 sc1")
    a("s_mov_b64 exec, -1")
    a("s_waitcnt vmcnt(0)")

    a.label("L_attn_issue")
    a.label("L_attn_issue_mod")
    a(f"s_cmp_ge_u32 {sAW}, {sGC}")
    a("s_cbranch_scc1 L_attn_issued")
    a(f"s_bfe_u32 {sT0}, {sJ}, 0x10003")
    a(f"s_lshl_b32 {sT0}, {sT0}, 3")
    a(f"s_add_u32 {sT0}, {sT0}, {sX}")
    a(f"s_lshl_b32 {sT0}, {sT0}, 1")
    a(f"s_lshr_b32 {sT1}, {sJ}, 4")
    a(f"s_add_u32 {sT0}, {sT0}, {sT1}")
    a(f"s_lshl_b32 {sT0}, {sT0}, 21")
    a(f"s_add_u32 {sT1}, {sGS}, {sAW}")
    a(f"s_lshl_b32 {sT1}, {sT1}, 13")
    a(f"s_add_u32 {sT0}, {sT0}, {sT1}")
    a(f"s_add_u32 {sT0}, {sT0}, {(6144+16)*256}")
    addbase(TB, KC, sT0)
    addbase(TB2, VC, sT0)
    a("v_lshlrev_b32 v4, 8, v2")
    a("v_lshl_add_u32 v4, v3, 4, v4")
    a("v_lshlrev_b32 v5, 10, v3")
    a("v_lshl_add_u32 v5, v2, 4, v5")
    for t in range(2):
        for kk in range(4):
            r = 16 + 4 * (4 * t + kk)
            a(f"global_load_dwordx4 v[{r}:{r+3}], v4, {TB} offset:{(t-1)*4096 + 64*kk} nt")
    for t in range(2):
        for rr in range(4):
            r = 48 + 4 * (4 * t + rr)
            a(f"global_load_dwordx4 v[{r}:{r+3}], v5, {TB2} offset:{(t-1)*4096 + 256*rr} nt")
    a.label("L_attn_issued")
    a(f"s_cmp_lg_u32 {sU}, 100")
    a("s_cbranch_scc1 L_attn_wait")
    a(f"s_cmp_lg_u32 {sROLE}, {R_MOD}")
    a("s_cbranch_scc1 L_attn_wait")
    a("s_barrier")
    a.label("L_attn_wait")
    a(f"s_cmp_lg_u32 {sWAVE}, 15")
    a("s_cbranch_scc1 L_bq")
    get_tag()
    a(f"s_lshl_b32 {sT0}, {sX}, 12")
    a(f"s_lshr_b32 {sT1}, {sJ}, 3")
    a(f"s_lshl_b32 {sT1}, {sT1}, 10")
    a(f"s_add_u32 {sT0}, {sT0}, {sT1}")
    a(f"s_add_u32 {sT0}, {sT0}, {WS_H2}")
    a(f"v_lshl_add_u32 v4, v1, 4, {sT0}")
    a("v_lshlrev_b32 v5, 3, v1")
    a(f"v_add_u32 v5, {L_Q}, v5")
    a("s_setprio 3")
    a.label("L_poll_q")
    a(f"global_load_dwordx4 v[8:11], v4, {WS} sc1")
    a("s_waitcnt vmcnt(0)")
    a(f"v_xor_b32 v6, {sTAG}, v9")
    a(f"v_xor_b32 v7, {sTAG}, v11")
    a("v_or_b32 v6, v6, v7")
    a("v_cmp_ne_u32 vcc, 0, v6")
    poll_tail("L_poll_q")
    a("s_mov_b64 exec, -1")
    a("v_mov_b32 v9, v10")
    a("ds_write_b64 v5, v[8:9]")
    a("s_setprio 0")
    a("s_waitcnt lgkmcnt(0)")
    a.label("L_bq")
    a("s_barrier")
    stamp(4)

    def wo_tr(lbl):
        a(f"s_sub_u32 {sT0}, {sROLE}, 1")
        a(f"s_cmp_ge_u32 {sT0}, 2")
        a(f"s_cbranch_scc1 {lbl}")
        a(f"s_lshl_b32 {sT1}, {sWAVE}, 12")
        a(f"s_add_u32 {sT1}, {sT1}, {L_W2}")
        tr_addr("v6", 128, sT1)
        tr_reads("v6", 128, 1, 4, 112)
        a.label(lbl)

    a(f"s_cmp_lt_u32 {sAW}, {sGC}")
    a("s_cbranch_scc1 L_qk")
    a("s_waitcnt vmcnt(0)")
    wo_tr("L_wotr1")
    a("s_barrier")
    a("s_branch L_bo")

    a.label("L_qk")
    a("v_bfe_u32 v6, v1, 2, 1")
    a("v_lshlrev_b32 v4, 8, v6")
    a("v_lshl_add_u32 v4, v3, 4, v4")
    a(f"v_add_u32 v4, {L_Q}, v4")
    for kk in range(4):
        a(f"ds_read_b128 v[{80+4*kk}:{83+4*kk}], v4 offset:{64*kk}")
    a(f"v_lshlrev_b32 v5, 2, v6")
    a(f"v_add_u32 v5, {L_MX}, v5")
    a(f"s_mov_b32 {sT0}, 0x3db504f3")
    a("s_waitcnt vmcnt(8) lgkmcnt(0)")
    for kk in range(4):
        for t in range(2):
            r = 16 + 4 * (4 * t + kk)
            d = f"v[{8+4*t}:{11+4*t}]"
            a(f"v_mfma_f32_16x16x32_bf16 {d}, v[{r}:{r+3}], v[{80+4*kk}:{83+4*kk}], {d if kk else '0'}")
    for i in range(4):
        bf16r2(f"v{8+2*i}", f"v{9+2*i}", f"v{8+2*i}", f"v{9+2*i}", f"v{96+i}")
    for i in range(8):
        a(f"v_mul_f32 v{8+i}, {sT0}, v{8+i}")
    for i in range(4):
        bf16r2(f"v{8+2*i}", f"v{9+2*i}", f"v{8+2*i}", f"v{9+2*i}", f"v{96+i}")
    a("v_max3_f32 v7, v8, v9, v10")
    a("v_max3_f32 v7, v7, v11, v12")
    a("v_max3_f32 v7, v7, v13, v14")
    a("v_max_f32 v7, v7, v15")
    a("s_mov_b32 exec_lo, 0x00110011")
    a("s_mov_b32 exec_hi, 0x00110011")
    a("ds_max_f32 v5, v7")
    a("s_mov_b64 exec, -1")
    a("s_waitcnt lgkmcnt(0)")
    a("s_barrier")
    a("ds_read_b32 v7, v5")
    a(f"s_mov_b32 {sT0}, 0x{LOG2E:08x}")
    a(f"s_lshl_b32 {sT1}, {sAW}, 2")
    a(f"s_add_u32 {sT1}, {sT1}, {L_LS}")
    a(f"v_lshl_add_u32 v5, v6, 6, {sT1}")
    a("s_waitcnt lgkmcnt(0)")
    a(f"v_mul_f32 v7, {sT0}, v7")
    for i in range(8):
        a(f"v_fma_f32 v{8+i}, v{8+i}, {sT0}, -v7")
    for i in range(8):
        a(f"v_exp_f32 v{8+i}, v{8+i}")
    a("v_add_f32 v7, v8, v9")
    a("v_add_f32 v4, v10, v11")
    a("v_add_f32 v7, v7, v12")
    a("v_add_f32 v4, v4, v13")
    a("v_add_f32 v7, v7, v14")
    a("v_add_f32 v4, v4, v15")
    a("v_add_f32 v7, v7, v4")
    for i in range(4):
        a(f"v_cvt_pk_bf16_f32 v{8+i}, v{8+2*i}, v{9+2*i}")
    a("v_mov_b32 v4, v7")
    a("v_permlane16_swap_b32 v7, v4")
    a("v_add_f32 v7, v7, v4")
    a("v_mov_b32 v4, v7")
    a("v_permlane32_swap_b32 v7, v4")
    a("v_add_f32 v7, v7, v4")
    a("s_mov_b64 exec, 0x11")
    a("ds_write_b32 v5, v7")
    a("s_mov_b64 exec, -1")
    wo_tr("L_wotr2")
    a("v_and_b32 v4, 1, v3")
    a("v_lshlrev_b32 v4, 9, v4")
    a("v_lshl_add_u32 v4, v2, 5, v4")
    a("v_lshrrev_b32 v5, 1, v3")
    a("v_lshl_add_u32 v4, v5, 4, v4")
    a(f"s_lshl_b32 {sT1}, {sAW}, 10")
    a(f"s_add_u32 {sT1}, {sT1}, {L_OP}")
    a(f"v_add_u32 v4, {sT1}, v4")
    a("v_cmp_lt_u32 vcc, 31, v1")
    stamp(5)
    for d in range(4):
        a(f"s_waitcnt vmcnt({6-2*d})")
        for jj in range(4):
            r0 = 48 + 4 * (2 * d) + jj
            r1 = 48 + 4 * (2 * d + 1) + jj
            a(f"v_perm_b32 v{80+4*(2*jj)+d}, v{r1}, v{r0}, {sPLO}")
            a(f"v_perm_b32 v{80+4*(2*jj+1)+d}, v{r1}, v{r0}, {sPHI}")
    stamp(6)
    for e in range(8):
        a(f"v_mfma_f32_16x16x32_bf16 v[{16+4*e}:{19+4*e}], v[8:11], v[{80+4*e}:{83+4*e}], 0")
    for cix in range(4):
        a(f"v_cndmask_b32 v{12+cix}, v{16+4*cix}, v{32+4*cix}, vcc")
    a("ds_write_b128 v4, v[12:15]")
    a.label("L_bo")
    a("s_waitcnt lgkmcnt(0)")
    a("s_barrier")
    a(f"s_sub_u32 {sT0}, {sWAVE}, 12")
    a(f"s_cmp_ge_u32 {sT0}, 2")
    a("s_cbranch_scc1 L_bpub")
    a(f"s_lshl_b32 {sT1}, {sT0}, 9")
    a(f"s_add_u32 {sT1}, {sT1}, {L_OP}")
    a(f"v_lshl_add_u32 v4, v1, 3, {sT1}")
    for w in range(12):
        a(f"ds_read_b64 v[{16+2*w}:{17+2*w}], v4 offset:{1024*w}")
    a(f"s_lshl_b32 {sT1}, {sT0}, 6")
    a(f"s_add_u32 {sT1}, {sT1}, {L_LS}")
    a(f"v_mov_b32 v5, {sT1}")
    for i in range(3):
        a(f"ds_read_b128 v[{40+4*i}:{43+4*i}], v5 offset:{16*i}")
    a(f"s_lshl_b32 {sT1}, {sT0}, 2")
    a(f"s_add_u32 {sT1}, {sT1}, {L_MX}")
    a(f"v_mov_b32 v5, {sT1}")
    a("ds_read_b32 v8, v5")
    a(f"s_lshl_b32 {sT1}, {sX}, 5")
    a(f"s_add_u32 {sT1}, {sT1}, {sJ}")
    a(f"s_mul_i32 {sT1}, {sT1}, 640")
    a(f"s_add_u32 {sT1}, {sT1}, {WS_H3}")
    a(f"s_lshl_b32 s56, {sT0}, 3")
    a(f"s_add_u32 s56, s56, {sT1}")
    a(f"v_mov_b32 v7, s56")
    a(f"s_lshl_b32 {sT0}, {sT0}, 8")
    a(f"s_add_u32 {sT1}, {sT1}, {sT0}")
    a(f"v_lshl_add_u32 v6, v1, 2, {sT1}")
    a("s_waitcnt lgkmcnt(0)")
    for (d, s) in ((0, 1), (2, 3), (4, 5), (0, 2), (0, 4)):
        a(f"v_pk_add_f32 v[{40+2*d}:{41+2*d}], v[{40+2*d}:{41+2*d}], v[{40+2*s}:{41+2*s}]")
    a("v_add_f32 v9, v40, v41")
    a("v_rcp_f32 v10, v9")
    for (d, s) in ((0, 1), (2, 3), (4, 5), (6, 7), (8, 9), (10, 11), (0, 2), (4, 6), (8, 10), (0, 4), (0, 8)):
        a(f"v_pk_add_f32 v[{16+2*d}:{17+2*d}], v[{16+2*d}:{17+2*d}], v[{16+2*s}:{17+2*s}]")
    a("v_mul_f32 v16, v16, v10")
    a("v_mul_f32 v17, v17, v10")
    a("v_cvt_pk_bf16_f32 v16, v16, v17")
    a("v_min_u32 v16, -2, v16")
    a("v_min_u32 v8, -2, v8")
    a("v_min_u32 v9, -2, v9")
    a(f"global_store_dword v6, v16, {WS} sc1")
    a("s_mov_b64 exec, 1")
    a(f"global_store_dwordx2 v7, v[8:9], {WS} offset:512 sc1")
    a("s_mov_b64 exec, -1")
    a.label("L_bpub")
    a("s_barrier")
    stamp(7)
    a(f"s_cmp_eq_u32 {sROLE}, {R_MLP}")
    a("s_cbranch_scc1 L_post_mlp")
    a(f"s_cmp_eq_u32 {sROLE}, {R_MOD}")
    a("s_cbranch_scc1 L_end")

    a(f"s_lshl_b32 {sT0}, {sX}, 1")
    a(f"s_lshr_b32 {sT1}, {sWAVE}, 3")
    a(f"s_add_u32 {sT0}, {sT0}, {sT1}")
    a(f"s_mul_i32 {sT0}, {sT0}, {16*640}")
    a(f"s_add_u32 {sT0}, {sT0}, {WS_H3}")
    a(f"s_bfe_u32 s56, {sWAVE}, 0x10002")
    a("v_lshlrev_b32 v5, 2, v3")
    a("v_xor_b32 v5, v5, v2")
    a("v_mul_u32_u24 v5, 640, v5")
    a("s_lshl_b32 s57, s56, 3")
    a(f"s_add_u32 s57, s57, {sT0}")
    a("v_add_u32 v5, s57, v5")
    a("v_mul_u32_u24 v4, 640, v2")
    a("v_lshl_add_u32 v4, v3, 4, v4")
    a(f"s_and_b32 {sT1}, {sWAVE}, 7")
    a(f"s_lshl_b32 {sT1}, {sT1}, 6")
    a(f"s_add_u32 {sT0}, {sT0}, {sT1}")
    a(f"v_add_u32 v4, {sT0}, v4")
    a(f"v_lshlrev_b32 v6, 4, v0")
    a(f"s_mov_b32 {sT0}, 0x{LOG2E:08x}")
    a.label("L_poll_h3")
    a(f"global_load_dwordx4 v[8:11], v4, {WS} sc1")
    a(f"global_load_dwordx2 v[12:13], v5, {WS} offset:512 sc1")
    a("s_waitcnt vmcnt(0)")
    max_chain("v7", ["v8", "v9", "v10", "v11", "v12", "v13"])
    a("v_cmp_eq_u32 vcc, -1, v7")
    poll_tail("L_poll_h3")
    a("s_mov_b64 exec, -1")
    stamp(8)
    for t in range(4):
        a(f"v_mfma_f32_16x16x32_bf16 v[{16+4*t}:{19+4*t}], v[8:11], v[{112+4*t}:{115+4*t}], 0")
    a("v_max_f32_dpp v14, v12, v12 quad_perm:[1,0,3,2] row_mask:0xf bank_mask:0xf")
    a("v_max_f32_dpp v14, v14, v14 quad_perm:[2,3,0,1] row_mask:0xf bank_mask:0xf")
    a("v_max_f32_dpp v14, v14, v14 row_half_mirror row_mask:0xf bank_mask:0xf")
    a("v_sub_f32 v12, v12, v14")
    a(f"v_mul_f32 v12, {sT0}, v12")
    a("v_exp_f32 v12, v12")
    a("v_mul_f32 v12, v12, v13")
    a("v_add_f32_dpp v14, v12, v12 quad_perm:[1,0,3,2] row_mask:0xf bank_mask:0xf")
    a("v_add_f32_dpp v14, v14, v14 quad_perm:[2,3,0,1] row_mask:0xf bank_mask:0xf")
    a("v_add_f32_dpp v14, v14, v14 row_half_mirror row_mask:0xf bank_mask:0xf")
    a("v_rcp_f32 v14, v14")
    a("v_mul_f32 v12, v12, v14")
    for t in range(4):
        a(f"v_mul_f32_dpp v{32+t}, v12, v{16+4*t} row_newbcast:0 row_mask:0xf bank_mask:0xf")
    for r in range(1, 4):
        for t in range(4):
            a(f"v_fmac_f32_dpp v{32+t}, v12, v{16+4*t+r} row_newbcast:{r} row_mask:0xf bank_mask:0xf")
    a("ds_write_b128 v6, v[32:35]")
    a("s_waitcnt lgkmcnt(0)")
    a("s_barrier")
    a(f"s_cmp_ge_u32 {sWAVE}, 2")
    a("s_cbranch_scc1 L_end")
    a(f"s_lshl_b32 {sT0}, {sWAVE}, 9")
    a(f"v_lshl_add_u32 v4, v1, 2, {sT0}")
    for w in range(16):
        a(f"ds_read2st64_b32 v[{16+2*w}:{17+2*w}], v4 offset0:{4*w} offset1:{4*w+1}")
    a(f"s_mul_i32 {sT0}, {sX}, 4608")
    a(f"s_mul_i32 {sT1}, {sWAVE}, 2304")
    a(f"s_add_u32 {sT0}, {sT0}, {sT1}")
    a(f"s_lshl_b32 {sT1}, {sU}, 8")
    a(f"s_add_u32 {sT0}, {sT0}, {sT1}")
    a(f"s_add_u32 {sT0}, {sT0}, {WS_H4}")
    a("v_and_b32 v5, 3, v1")
    a("v_lshlrev_b32 v5, 6, v5")
    a("v_and_b32 v6, 60, v1")
    a(f"v_add3_u32 v5, v5, v6, {sT0}")
    a("s_waitcnt lgkmcnt(0)")
    st = 1
    while st < 16:
        for d in range(0, 16, 2 * st):
            a(f"v_pk_add_f32 v[{16+2*d}:{17+2*d}], v[{16+2*d}:{17+2*d}], v[{16+2*(d+st)}:{17+2*(d+st)}]")
        st *= 2
    a("v_add_f32 v16, v16, v17")
    a("v_min_u32 v16, -2, v16")
    a(f"global_store_dword v5, v16, {WS} sc1")
    stamp(9)
    a("s_branch L_end")

    a.label("L_post_mlp")
    a(f"s_cmp_eq_u32 {sWAVE}, 15")
    a("s_cbranch_scc1 L_end")
    a(f"s_cmp_eq_u32 {sWAVE}, 14")
    a("s_cbranch_scc1 L_mlp_fin")
    a(f"s_cmp_ge_u32 {sWAVE}, 9")
    a("s_cbranch_scc1 L_mlp_ln")
    a("v_and_b32 v4, 31, v1")
    a(f"s_lshl_b32 {sT0}, {sU}, 6")
    a(f"v_lshl_add_u32 v4, v4, 1, {sT0}")
    a(f"global_load_ushort v15, v4, {B1}")
    a(f"s_mul_i32 {sT1}, {sWAVE}, {64*9216}")
    a(f"s_add_u32 {sT0}, {sT0}, {sT1}")
    addbase(TB, W1, sT0)
    lane_off("v4", 64, 9216)
    a(f"s_lshl_b32 s56, {sWAVE}, 12")
    dma_block(TB, "s56", 4, 16, 9216, "v4")
    a(f"s_mul_i32 {sT0}, {sU}, {32*1152}")
    a(f"s_lshl_b32 {sT1}, {sWAVE}, 7")
    a(f"s_add_u32 {sT0}, {sT0}, {sT1}")
    addbase(TB2, W2, sT0)
    lane_off("v4", 128, 1152)
    a(f"s_add_u32 s57, s56, 36864")
    dma_block(TB2, "s57", 4, 8, 1152, "v4")
    tr_addr("v5", 64, "s56")
    tr_addr("v9", 128, "s57")
    act_addr("v6")
    part_addr("v8", 32, 2)
    a("v_and_b32 v7, 1, v1")
    a("v_lshlrev_b32 v7, 6, v7")
    a("v_lshl_add_u32 v7, v3, 4, v7")
    a(f"v_add_u32 v7, {L_HID}, v7")
    a("v_lshrrev_b32 v4, 1, v2")
    a(f"v_mov_b32 v14, {L_ZERO}")
    for t in range(4):
        a(f"v_cmp_eq_u32 vcc, {t}, v4")
        a(f"v_cndmask_b32 v{10+t}, v14, v7, vcc")
    a("v_and_b32 v7, 1, v1")
    a("v_mul_u32_u24 v14, 2304, v7")
    a("v_lshl_add_u32 v14, v4, 6, v14")
    a("v_lshl_add_u32 v14, v3, 4, v14")
    a(f"s_mul_i32 {sT0}, {sU}, 4608")
    a(f"s_lshl_b32 {sT1}, {sWAVE}, 8")
    a(f"s_add_u32 {sT0}, {sT0}, {sT1}")
    a(f"s_add_u32 {sT0}, {sT0}, {WS_H5}")
    a(f"v_add_u32 v14, {sT0}, v14")
    a("s_waitcnt vmcnt(4)")
    tr_reads("v5", 64, 2, 2, 24)
    a("s_waitcnt vmcnt(0)")
    stamp(1)
    tr_reads("v9", 128, 1, 4, 64)
    a("v_lshlrev_b32 v15, 16, v15")
    a("s_waitcnt lgkmcnt(0)")
    a("s_barrier")
    a("s_barrier")
    a("s_barrier")
    a("ds_read_b128 v[16:19], v6")
    a("ds_read_b128 v[20:23], v6 offset:64")
    a("s_waitcnt lgkmcnt(0)")
    gemv_mfma(2, 24, 16, 56, 2)
    part_write("v8", 2, 56, 2)
    a("s_waitcnt lgkmcnt(0)")
    a("s_barrier")
    a(f"s_cmp_lg_u32 {sWAVE}, 0")
    a("s_cbranch_scc1 L_mlp_p5")
    a("v_lshlrev_b32 v4, 2, v1")
    a(f"v_add_u32 v4, {L_PART}, v4")
    for w in range(4):
        a(f"ds_read2st64_b32 v[{24+2*w}:{25+2*w}], v4 offset0:{2*w} offset1:{2*w+1}")
    a("ds_read_b32 v32, v4 offset:2048")
    a("v_lshlrev_b32 v5, 1, v1")
    a(f"v_add_u32 v5, {L_HID}, v5")
    a("s_mov_b32 s56, 0x3d372713")
    a("s_mov_b32 s57, 0xc0135761")
    a("s_waitcnt lgkmcnt(0)")
    a("v_pk_add_f32 v[24:25], v[24:25], v[26:27]")
    a("v_pk_add_f32 v[28:29], v[28:29], v[30:31]")
    a("v_pk_add_f32 v[24:25], v[24:25], v[28:29]")
    a("v_add_f32 v24, v24, v32")
    a("v_add_f32 v24, v24, v25")
    a("v_cvt_pk_bf16_f32 v24, v24, v24")
    a("v_lshlrev_b32 v24, 16, v24")
    a("v_add_f32 v24, v24, v15")
    a("v_cvt_pk_bf16_f32 v24, v24, v24")
    a("v_lshlrev_b32 v24, 16, v24")
    a("v_mul_f32 v25, v24, v24")
    a("v_fma_f32 v25, v25, s56, 1.0")
    a("v_mul_f32 v25, v25, v24")
    a("v_mul_f32 v25, s57, v25")
    a("v_exp_f32 v25, v25")
    a("v_add_f32 v25, 1.0, v25")
    a("v_rcp_f32 v25, v25")
    a("v_mul_f32 v24, v24, v25")
    a("v_cvt_pk_bf16_f32 v24, v24, v24")
    a("ds_write_b16 v5, v24")
    a("s_waitcnt lgkmcnt(0)")
    a.label("L_mlp_p5")
    a("s_barrier")
    for t in range(4):
        a(f"ds_read_b128 v[{16+4*t}:{19+4*t}], v{10+t}")
    for t in range(4):
        a(f"s_waitcnt lgkmcnt({3-t})")
        a(f"v_mfma_f32_16x16x32_bf16 v[32:35], v[{64+4*t}:{67+4*t}], v[{16+4*t}:{19+4*t}], {'v[32:35]' if t else '0'}")
    for i in range(4):
        a(f"v_min_u32 v{32+i}, -2, v{32+i}")
    a("s_mov_b32 exec_lo, 0x00ff00ff")
    a("s_mov_b32 exec_hi, 0x00ff00ff")
    a(f"global_store_dwordx4 v14, v[32:35], {WS} sc1")
    a("s_mov_b64 exec, -1")
    stamp(9)
    a("s_branch L_end")

    a.label("L_mlp_ln")
    a(f"s_sub_u32 s56, {sWAVE}, 9")
    a("v_and_b32 v4, 31, v1")
    a("s_lshl_b32 s57, s56, 5")
    a("v_add_u32 v4, s57, v4")
    a("v_lshrrev_b32 v5, 5, v1")
    a("v_cmp_gt_u32 vcc, 144, v4")
    a(f"s_mov_b64 {SAVE}, vcc")
    a("v_lshlrev_b32 v13, 6, v5")
    a(f"v_add_u32 v13, {L_RED}, v13")
    a("s_lshl_b32 s57, s56, 3")
    a("v_add_u32 v12, s57, v13")
    a(f"v_lshlrev_b32 v15, 4, v5")
    for i in range(4):
        a(f"v_mov_b32 v{64+i}, 0")
    a("s_mov_b64 exec, vcc")
    a("v_mul_u32_u24 v6, 1152, v5")
    a("v_lshl_add_u32 v6, v4, 3, v6")
    a(f"global_load_dwordx2 v[60:61], v6, {X}")
    a("v_lshlrev_b32 v7, 1, v6")
    a(f"v_add_u32 v14, {L_X1}, v7")
    a(f"v_add_u32 v8, {WS_H4 + 4096}, v7")
    a("v_add_u32 v9, 9216, v8")
    a("v_add_u32 v10, 9216, v9")
    a("v_add_u32 v11, 9216, v10")
    a("v_lshlrev_b32 v7, 4, v4")
    a(f"v_add_u32 v7, {WS_MR + 2304}, v7")
    a(f"v_add_u32 v6, {L_ACT}, v6")
    a.label("L_poll_h4")
    for i in range(3):
        a(f"global_load_dwordx4 v[{48+4*i}:{51+4*i}], v7, {WS} offset:{2304*(i-1)} sc1")
    for i in range(8):
        a(f"global_load_dwordx4 v[{16+4*i}:{19+4*i}], v{8+i//2}, {WS} offset:{-4096 + 4608*(i % 2)} sc1")
    a("s_waitcnt vmcnt(0)")
    max_chain("v62", [f"v{i}" for i in range(16, 60)])
    a("v_cmp_eq_u32 vcc, -1, v62")
    poll_tail("L_poll_h4")
    a(f"s_mov_b64 exec, {SAVE}")
    stamp(8)
    for (d, s) in ((0, 1), (2, 3), (4, 5), (6, 7), (0, 2), (4, 6), (0, 4)):
        for h in range(2):
            a(f"v_pk_add_f32 v[{16+4*d+2*h}:{17+4*d+2*h}], v[{16+4*d+2*h}:{17+4*d+2*h}], v[{16+4*s+2*h}:{17+4*s+2*h}]")
    for i in range(12):
        a(f"v_lshrrev_b32 v{48+i}, v15, v{48+i}")
        a(f"v_lshlrev_b32 v{48+i}, 16, v{48+i}")
    bf16r2("v16", "v17", "v16", "v17", "v62")
    bf16r2("v18", "v19", "v18", "v19", "v63")
    for i in range(4):
        a(f"v_mul_f32 v{16+i}, v{16+i}, v{48+i}")
    bf16r2("v16", "v17", "v16", "v17", "v62")
    bf16r2("v18", "v19", "v18", "v19", "v63")
    a("v_lshlrev_b32 v20, 16, v60")
    a(f"v_and_b32 v21, {sHI16}, v60")
    a("v_lshlrev_b32 v22, 16, v61")
    a(f"v_and_b32 v23, {sHI16}, v61")
    for i in range(4):
        a(f"v_add_f32 v{16+i}, v{16+i}, v{20+i}")
    bf16r2("v64", "v65", "v16", "v17", "v62")
    bf16r2("v66", "v67", "v18", "v19", "v63")
    a("ds_write_b128 v14, v[64:67]")
    for i in range(4):
        a(f"v_add_f32 v{56+i}, 1.0, v{56+i}")
    bf16r2("v56", "v57", "v56", "v57", "v62")
    bf16r2("v58", "v59", "v58", "v59", "v63")
    a("s_mov_b64 exec, -1")
    a("s_mov_b32 s57, 0x3ae38e39")

    def ln_round(rnd):
        a("v_add_f32 v24, v64, v65")
        a("v_mul_f32 v25, v64, v64")
        a("v_add_f32 v24, v24, v66")
        a("v_fmac_f32 v25, v65, v65")
        a("v_add_f32 v24, v24, v67")
        a("v_fmac_f32 v25, v66, v66")
        a("v_fmac_f32 v25, v67, v67")
        for sh in (8, 4, 2, 1):
            for r in ("v24", "v25"):
                a(f"v_add_f32_dpp {r}, {r}, {r} row_ror:{sh} row_mask:0xf bank_mask:0xf")
        for r in ("v24", "v25"):
            a(f"v_add_f32_dpp {r}, {r}, {r} row_bcast:15 row_mask:0xa bank_mask:0xf")
        a("s_mov_b32 exec_lo, 0x80000000")
        a("s_mov_b32 exec_hi, 0x80000000")
        a(f"ds_write_b64 v12, v[24:25] offset:{128*rnd}")
        a("s_mov_b64 exec, -1")
        a("s_waitcnt lgkmcnt(0)")
        a("s_barrier")
        a(f"ds_read_b128 v[24:27], v13 offset:{128*rnd}")
        a(f"ds_read_b128 v[28:31], v13 offset:{128*rnd+16}")
        a(f"ds_read_b64 v[32:33], v13 offset:{128*rnd+32}")
        a("s_waitcnt lgkmcnt(0)")
        a("v_pk_add_f32 v[24:25], v[24:25], v[26:27]")
        a("v_pk_add_f32 v[28:29], v[28:29], v[30:31]")
        a("v_pk_add_f32 v[24:25], v[24:25], v[32:33]")
        a("v_pk_add_f32 v[24:25], v[24:25], v[28:29]")
        a("v_mul_f32 v24, s57, v24")
        a("v_mul_f32 v25, s57, v25")
        a("v_fma_f32 v25, -v24, v24, v25")
        a("v_max_f32 v25, 0, v25")
        bf16r2("v24", "v25", "v24", "v25", "v26")
        a("v_add_f32 v25, 0x3727c5ac, v25")
        for i in range(4):
            a(f"v_sub_f32 v{64+i}, v{64+i}, v24")
        a("v_cvt_pk_bf16_f32 v25, v25, v25")
        a("v_lshlrev_b32 v25, 16, v25")
        a("v_sqrt_f32 v25, v25")
        bf16r2("v64", "v65", "v64", "v65", "v62")
        a("v_cvt_pk_bf16_f32 v25, v25, v25")
        a("v_lshlrev_b32 v25, 16, v25")
        a("v_rcp_f32 v25, v25")
        bf16r2("v66", "v67", "v66", "v67", "v63")
        for i in range(4):
            a(f"v_mul_f32 v{64+i}, v{64+i}, v25")

    ln_round(0)
    a(f"s_mov_b64 exec, {SAVE}")
    bf16r2("v68", "v69", "v64", "v65", "v62")
    bf16r2("v70", "v71", "v66", "v67", "v63")
    a("s_mov_b64 exec, -1")
    for i in range(4):
        a(f"v_mov_b32 v{64+i}, 0")
    a(f"s_mov_b64 exec, {SAVE}")
    for i in range(4):
        a(f"v_mul_f32 v{68+i}, v{68+i}, v{56+i}")
    bf16r2("v68", "v69", "v68", "v69", "v62")
    bf16r2("v70", "v71", "v70", "v71", "v63")
    for i in range(4):
        a(f"v_add_f32 v{68+i}, v{68+i}, v{52+i}")
    bf16r2("v64", "v65", "v68", "v69", "v62")
    bf16r2("v66", "v67", "v70", "v71", "v63")
    a("s_mov_b64 exec, -1")
    ln_round(1)
    a("v_cvt_pk_bf16_f32 v64, v64, v65")
    a("v_cvt_pk_bf16_f32 v65, v66, v67")
    a(f"s_mov_b64 exec, {SAVE}")
    a("ds_write_b64 v6, v[64:65]")
    a("s_waitcnt lgkmcnt(0)")
    stamp(9)
    a("s_barrier")
    a("s_branch L_end")

    a.label("L_mlp_fin")
    a(f"s_cmp_ge_u32 {sU}, 72")
    a("s_cselect_b32 s56, 72, 0")
    a("s_cselect_b32 s58, 16, 0")
    a(f"s_sub_u32 s56, {sU}, s56")
    a("v_and_b32 v4, 1, v1")
    a("s_lshl_b32 s57, s56, 4")
    a("v_lshl_add_u32 v5, v4, 3, s57")
    a(f"global_load_dwordx2 v[40:41], v5, {B2}")
    a("v_lshlrev_b32 v5, 1, v5")
    a(f"v_add_u32 v5, {WS_MR + 1728*4}, v5")
    a(f"s_lshl_b32 s57, {sU}, 5")
    a("v_lshl_add_u32 v6, v4, 4, s57")
    a(f"v_add_u32 v7, {L_X1}, v6")
    a("v_lshrrev_b32 v13, 1, v6")
    a("v_lshrrev_b32 v8, 1, v1")
    a("v_mul_u32_u24 v8, 4608, v8")
    a(f"v_add_u32 v8, {WS_H5}, v8")
    a("v_add_u32 v8, v8, v6")
    for i in range(1, 5):
        a(f"v_add_u32 v{8+i}, {32*4608}, v{7+i}")
    a("v_cmp_gt_u32 vcc, 32, v1")
    a("v_cndmask_b32 v12, v11, v12, vcc")
    a(f"s_mov_b64 {SAVE}, vcc")
    get_tag()
    a("s_barrier")
    a("ds_read_b128 v[44:47], v7")
    a("s_barrier")
    a("s_barrier")
    a("s_barrier")
    a("s_barrier")
    a.label("L_poll_h5")
    a(f"global_load_dwordx4 v[36:39], v5, {WS} sc1")
    for i in range(5):
        a(f"global_load_dwordx4 v[{16+4*i}:{19+4*i}], v{8+i}, {WS} sc1")
    a("s_waitcnt vmcnt(0)")
    max_chain("v14", [f"v{i}" for i in range(16, 40)])
    a("v_cmp_eq_u32 vcc, -1, v14")
    poll_tail("L_poll_h5")
    a(f"s_mov_b64 exec, {SAVE}")
    stamp(8)
    a("v_pk_add_f32 v[16:17], v[16:17], v[32:33]")
    a("v_pk_add_f32 v[18:19], v[18:19], v[34:35]")
    a("s_mov_b64 exec, -1")
    for (d, s) in ((0, 1), (2, 3), (0, 2)):
        for h in range(2):
            a(f"v_pk_add_f32 v[{16+4*d+2*h}:{17+4*d+2*h}], v[{16+4*d+2*h}:{17+4*d+2*h}], v[{16+4*s+2*h}:{17+4*s+2*h}]")
    for sh in (8, 4, 2):
        for i in range(4):
            a(f"v_add_f32_dpp v{16+i}, v{16+i}, v{16+i} row_ror:{sh} row_mask:0xf bank_mask:0xf")
    for sw in ("16", "32"):
        for i in range(4):
            a(f"v_mov_b32 v{20+i}, v{16+i}")
        for i in range(4):
            a(f"v_permlane{sw}_swap_b32 v{16+i}, v{20+i}")
        for i in range(4):
            a(f"v_add_f32 v{16+i}, v{16+i}, v{20+i}")
    bf16r2("v16", "v17", "v16", "v17", "v14")
    bf16r2("v18", "v19", "v18", "v19", "v15")
    a("v_lshlrev_b32 v20, 16, v40")
    a(f"v_and_b32 v21, {sHI16}, v40")
    a("v_lshlrev_b32 v22, 16, v41")
    a(f"v_and_b32 v23, {sHI16}, v41")
    for i in range(4):
        a(f"v_add_f32 v{16+i}, v{16+i}, v{20+i}")
    bf16r2("v16", "v17", "v16", "v17", "v14")
    bf16r2("v18", "v19", "v18", "v19", "v15")
    for i in range(4):
        a(f"v_lshrrev_b32 v{36+i}, s58, v{36+i}")
        a(f"v_lshlrev_b32 v{36+i}, 16, v{36+i}")
    for i in range(4):
        a(f"v_mul_f32 v{16+i}, v{16+i}, v{36+i}")
    bf16r2("v16", "v17", "v16", "v17", "v14")
    bf16r2("v18", "v19", "v18", "v19", "v15")
    a("s_waitcnt lgkmcnt(0)")
    for i in range(4):
        a(f"v_add_f32 v{16+i}, v{16+i}, v{44+i}")
    a("v_cvt_pk_bf16_f32 v16, v16, v17")
    a("v_cvt_pk_bf16_f32 v17, v18, v19")
    a("s_mov_b64 exec, 3")
    a(f"global_store_dwordx2 v13, v[16:17], {OUT}")
    a(f"s_cmp_lg_u32 {sU}, 0")
    a("s_cbranch_scc1 L_fin2")
    a("s_mov_b64 exec, 1")
    a(f"v_mov_b32 v4, {WS_EPOCH}")
    a(f"v_mov_b32 v5, {sTAG}")
    a(f"global_store_dword v4, v5, {WS} sc1")
    a.label("L_fin2")
    stamp(9)

    a.label("L_end")
    if dbg:
        def fold(lbl, role, wave, items):
            a(f"s_cmp_lg_u32 {sROLE}, {role}")
            a(f"s_cbranch_scc1 {lbl}")
            a(f"s_cmp_lg_u32 {sWAVE}, {wave}")
            a(f"s_cbranch_scc1 {lbl}")
            a("s_mov_b64 exec, -1")
            a("v_mov_b32 v5, 0")
            for slot, k in items:
                if k < 0:
                    a("s_not_b32 s56, s80")
                    a(f"v_writelane_b32 v5, s56, {slot}")
                else:
                    a(f"v_writelane_b32 v5, s{80+2*k}, {slot}")
            a("v_lshlrev_b32 v4, 2, v1")
            a("s_mov_b64 exec, 0xffff")
            a(f"global_atomic_umax v4, v5, {DBG}")
            a.label(lbl)
        fold("L_f1", R_MLP, 14, [(0, -1), (1, 0), (2, 4), (3, 7), (4, 8), (5, 9)])
        fold("L_f2", R_Q, 0, [(6, 1), (7, 3), (8, 4), (9, 7), (10, 8), (11, 9)])
        fold("L_f3", R_MOD, 0, [(12, 1), (13, 2), (14, 3)])
        fold("L_f4", R_MLP, 9, [(15, 8)])
    elif profile:
        a("s_mov_b64 exec, 1")
        a("s_lshl_b32 s56, s2, 4")
        a(f"s_add_u32 s56, s56, {sWAVE}")
        a("s_lshl_b32 s56, s56, 6")
        a(f"s_add_u32 s56, s56, {WS_STAMP}")
        a("v_mov_b32 v4, s56")
        for k in range(10):
            a(f"v_mov_b32 v5, s{80+2*k}")
            a(f"global_store_dword v4, v5, {WS} offset:{4*k}")
        a("s_getreg_b32 s57, hwreg(HW_REG_XCC_ID)")
        a("v_mov_b32 v5, s57")
        a(f"global_store_dword v4, v5, {WS} offset:40")
    a.label("L_exit")

    hdr = open("cdna_kernels/" + NAME + ".s.ref").read().split("; @launch")[0]
    pre = ""
    if profile:
        pre = "".join(f"    s_mov_b32 s{80+2*k}, 0\n" for k in range(10))
    text = hdr + f"""; @launch grid=(256,1,1) block=(1024,1,1) lds={LDS_BYTES}
.amdgcn_target "amdgcn-amd-amdhsa--gfx950"
.text
.globl {NAME}_kernel
.p2align 8
.type {NAME}_kernel,@function
{NAME}_kernel:
""" + pre + a.text() + f"""    s_endpgm
.section .rodata,"a"
.p2align 6
.amdhsa_kernel {NAME}_kernel
  .amdhsa_next_free_vgpr 128
  .amdhsa_next_free_sgpr 102
  .amdhsa_accum_offset 128
  .amdhsa_group_segment_fixed_size 0
  .amdhsa_kernarg_size 120
  .amdhsa_user_sgpr_count 2
  .amdhsa_user_sgpr_kernarg_segment_ptr 1
  .amdhsa_system_sgpr_workgroup_id_x 1
.end_amdhsa_kernel
"""
    return text


if __name__ == "__main__":
    prof = "--profile" in sys.argv
    out = [x for x in sys.argv[1:] if not x.startswith("--")]
    path = out[0] if out else "cdna_kernels/" + NAME + ".s"
    open(path, "w").write(gen(profile=prof or "--dbg" in sys.argv, dbg="--dbg" in sys.argv))
    print("wrote", path)
```
